```python
import torch

def _softmax(x, axis=-1):
    return torch.softmax(x, dim=axis)
def _gelu(x):
    return torch.nn.functional.gelu(x, approximate="tanh")
def _silu(x):
    return torch.nn.functional.silu(x)
def _sigmoid(x):
    return torch.sigmoid(x)
def _layernorm(x, axis=-1, eps=1e-5):
    m = x.mean(dim=axis, keepdim=True)
    v = x.var(dim=axis, keepdim=True, unbiased=False)
    return (x - m) / torch.sqrt(v + eps)
def _scatter_add(tgt, idx, src, axis=0):
    return tgt.clone().index_add_(axis, idx, src)
def _segment_sum(src, seg, n):
    out = torch.zeros((n,) + src.shape[1:], dtype=src.dtype)
    return out.index_add_(0, seg, src)
def _pad(x, pw):
    flat = tuple(v for pair in reversed(pw) for v in pair)
    return torch.nn.functional.pad(x, flat)

kernel_name = 'concat_heads__gqa_block_cached__compressed_kv_cla__decode'

def setup_inputs():

    _w = (lambda a: (lambda t: t.to(torch.bfloat16) if t.is_floating_point() else t)(torch.as_tensor(a)))
    def _A_setup():
        B, Sq, D = 2, 1, 512
        Hq, Hkv, Sk, Dh = 32, 32, 8192, 128
        assert Hq % Hkv == 0, (Hq, Hkv)
        return {
            "x": _w((lambda *s: torch.randn(*s, dtype=torch.bfloat16) * 1.6)(B, Sq, D)),
            "k_cache": _w((lambda *s: torch.randn(*s, dtype=torch.bfloat16) * 1.6)(B, Hkv, Sk, Dh)),
            "v_cache": _w((lambda *s: torch.randn(*s, dtype=torch.bfloat16) * 0.05)(B, Hkv, Sk, Dh)),
            "wq": _w((lambda *s: torch.randn(*s, dtype=torch.bfloat16) * 1.6)(D, Hq * Dh) * (D ** -0.5)),
            "wo": _w((lambda *s: torch.randn(*s, dtype=torch.bfloat16) * 0.05)(Hq * Dh, D) * ((Hq * Dh) ** -0.5)),
        }
    _A_in = _A_setup()

    def _B_setup():
        B, H, Sq, Sk, D, M = 2, 32, 1, 8192, 128, 512
        Dc = 4 * D
        return {
            "x": _w((lambda *s: torch.randn(*s, dtype=torch.bfloat16) * 3.2)(B, Sq, M)),
            "c_kv": _w((lambda *s: torch.randn(*s, dtype=torch.bfloat16) * 0.1)(B, Sk, Dc)),
            "w_q": _w((lambda *s: torch.randn(*s, dtype=torch.bfloat16) * 6.4)(M, H, D) * (M ** -0.5)),
            "w_uk": _w((lambda *s: torch.randn(*s, dtype=torch.bfloat16) * 6.4)(Dc, H, D) * (Dc ** -0.5)),
            "w_uv": _w((lambda *s: torch.randn(*s, dtype=torch.bfloat16) * 0.1)(Dc, H, D) * (Dc ** -0.5)),
            "w_o": _w((lambda *s: torch.randn(*s, dtype=torch.bfloat16) * 0.1)(H, D, M) * ((H * D) ** -0.5)),
        }
    _B_in = _B_setup()

    return {
        "A_x": _A_in["x"],
        "A_k_cache": _A_in["k_cache"],
        "A_v_cache": _A_in["v_cache"],
        "A_wq": _A_in["wq"],
        "A_wo": _A_in["wo"],
        "B_x": _B_in["x"],
        "B_c_kv": _B_in["c_kv"],
        "B_w_q": _B_in["w_q"],
        "B_w_uk": _B_in["w_uk"],
        "B_w_uv": _B_in["w_uv"],
        "B_w_o": _B_in["w_o"],
    }

def reference(A_x, A_k_cache, A_v_cache, A_wq, A_wo, B_x, B_c_kv, B_w_q, B_w_uk, B_w_uv, B_w_o):
    def _A_ref(x, k_cache, v_cache, wq, wo):
        B, Sq, D = x.shape
        Hq, Dh = 32, 128
        Hkv = k_cache.shape[1]
        rep = Hq // Hkv
        q = (lambda x, *d: x.permute(*d))((x @ wq).reshape(B, Sq, Hq, Dh), 0, 2, 1, 3)
        k = (lambda x, n, axis: torch.repeat_interleave(x, n, dim=axis))(k_cache, rep, axis=1)
        v = (lambda x, n, axis: torch.repeat_interleave(x, n, dim=axis))(v_cache, rep, axis=1)
        scores = torch.einsum("bhqd,bhkd->bhqk", q, k) * (Dh ** -0.5)
        p = _softmax(scores, axis=-1)
        o = torch.einsum("bhqk,bhkd->bhqd", p, v)
        return (lambda x, *d: x.permute(*d))(o, 0, 2, 1, 3).reshape(B, Sq, Hq * Dh) @ wo

    def _B_ref(x, c_kv, w_q, w_uk, w_uv, w_o):
        B, Sq, M = x.shape[0], x.shape[1], x.shape[2]
        Sk = c_kv.shape[1]
        H, D = w_q.shape[1], w_q.shape[2]
        q = torch.einsum("bqm,mhd->bhqd", x, w_q)
        k = torch.einsum("bkc,chd->bhkd", c_kv, w_uk)
        v = torch.einsum("bkc,chd->bhkd", c_kv, w_uv)
        scores = torch.einsum("bhqd,bhkd->bhqk", q, k) * (D ** -0.5)
        off = Sk - Sq
        qi = torch.arange(Sq)[:, None]
        kj = torch.arange(Sk)[None, :]
        cmask = kj <= (qi + off)
        scores = torch.where(cmask[None, None], scores, -1e9)
        p = _softmax(scores, axis=-1)
        ctx = torch.einsum("bhqk,bhkd->bhqd", p, v)
        return torch.einsum("bhqd,hdm->bqm", ctx, w_o)

    a = _A_ref(A_x, A_k_cache, A_v_cache, A_wq, A_wo)
    b = _B_ref(B_x, B_c_kv, B_w_q, B_w_uk, B_w_uv, B_w_o)
    return torch.concatenate([a, b], axis=-1)
```

```python
import re

class Asm:
    def __init__(self):
        self.lines = []
    def __call__(self, s=''):
        for l in s.split('\n'):
            self.lines.append(l)
    def label(self, name):
        self.lines.append(name + ':')
    def nop(self, n):
        while n > 0:
            k = min(n, 16)
            self.lines.append(f's_nop {k-1}')
            n -= k
    def text(self):
        return '\n'.join(self.lines) + '\n'

def vr(a, n=1):
    return f'v{a}' if n == 1 else f'v[{a}:{a+n-1}]'
def sr(a, n=1):
    return f's{a}' if n == 1 else f's[{a}:{a+n-1}]'

REG = re.compile(r'^(-|\|)?(v|s|a)(\d+)\|?$')
RNG = re.compile(r'^(v|s|a)\[(\d+):(\d+)\]$')
def regs(op):
    op = op.strip()
    for pre in ('-', 'abs(', 'neg('):
        if op.startswith(pre): op = op[len(pre):]
    op = op.rstrip(')')
    m = RNG.match(op)
    if m: return {(m.group(1), i) for i in range(int(m.group(2)), int(m.group(3)) + 1)}
    m = REG.match(op)
    if m: return {(m.group(2), int(m.group(3)))}
    if op == 'vcc': return {('s', 'vcc')}
    if op in ('vcc_lo', 'vcc_hi'): return {('s', 'vcc')}
    if op == 'exec' or op in ('exec_lo', 'exec_hi'): return {('s', 'exec')}
    if op == 'm0': return {('s', 'm0')}
    return set()

TRANS = ('v_exp_f32', 'v_log_f32', 'v_rcp_f32', 'v_rsq_f32', 'v_sqrt_f32', 'v_sin_f32', 'v_cos_f32')
def parse(line):
    line = line.split(';')[0].split('//')[0].strip()
    if not line or line.endswith(':') or line.startswith('.'): return None
    parts = line.split(None, 1)
    mn = parts[0]
    rest = parts[1] if len(parts) > 1 else ''
    ops = [o.strip() for o in re.split(r',(?![^\[]*\])', rest)]
    mods = ''
    if ops and ops[-1]:
        toks = ops[-1].split()
        ops[-1] = toks[0]
        mods = ' '.join(toks[1:])
    I = dict(mn=mn, ops=ops, mods=mods, line=line)
    base = mn.replace('_e32', '').replace('_e64', '').replace('_dpp', '').replace('_sdwa', '')
    I['base'] = base
    isv = mn.startswith('v_')
    I['mfma'] = mn.startswith('v_mfma')
    I['valu'] = isv and not I['mfma']
    I['dpp'] = ('_dpp' in mn) or ('row_' in mods) or ('quad_perm' in mods)
    I['trans'] = base in TRANS
    I['dot'] = base.startswith('v_dot')
    I['vmem'] = mn.startswith(('buffer_', 'global_', 'flat_'))
    I['ds'] = mn.startswith('ds_')
    I['salu'] = mn.startswith('s_')
    dst, src = set(), set()
    R = [regs(o) for o in ops]
    if isv:
        if base.startswith('v_cmp'):
            dst = R[0]; src = set().union(*R[1:]) if len(R) > 1 else set()
            if base.startswith('v_cmpx'): dst = dst | {('s', 'exec')}
        elif base in ('v_readlane_b32', 'v_readfirstlane_b32'):
            dst = R[0]; src = set().union(*R[1:])
        elif base in ('v_permlane16_swap_b32', 'v_permlane32_swap_b32'):
            dst = R[0] | R[1]; src = R[0] | R[1]
        elif base in ('v_add_co_u32', 'v_sub_co_u32', 'v_addc_co_u32', 'v_subb_co_u32'):
            dst = R[0] | R[1]; src = set().union(*R[2:])
        else:
            dst = R[0]; src = set().union(*R[1:]) if len(R) > 1 else set()
            if base in ('v_fmac_f32', 'v_dot2c_f32_bf16', 'v_writelane_b32') or I['dpp']: src |= R[0]
            if base == 'v_cndmask_b32' and len(ops) == 3: src |= {('s', 'vcc')}
    elif I['vmem']:
        lds = 'lds' in mods.split()
        if 'load' in mn and not lds:
            dst = R[0]; src = set().union(*R[1:])
        elif 'atomic' in mn and 'sc0' in mods.split():
            dst = R[0]; src = set().union(*R[1:])
        else:
            src = set().union(*R) if R else set()
        if lds: src |= {('s', 'm0')}
        I['lds'] = lds
        I['store'] = 'store' in mn
        I['wide_store'] = I['store'] and ('x4' in mn or 'x3' in mn)
        if I['store']:
            I['sdata'] = R[1] if mn.startswith('global') else R[0]
    elif I['ds']:
        if mn.startswith(('ds_read', 'ds_bpermute', 'ds_permute', 'ds_swizzle')):
            dst = R[0]; src = set().union(*R[1:]) if len(R) > 1 else set()
        else:
            src = set().union(*R)
    elif I['salu']:
        if mn.startswith(('s_cmp', 's_cbranch', 's_branch', 's_waitcnt', 's_nop', 's_barrier', 's_endpgm', 's_sleep', 's_setprio', 's_bitcmp')):
            src = set().union(*R) if R else set()
        else:
            dst = R[0] if R else set(); src = set().union(*R[1:]) if len(R) > 1 else set()
            if 'saveexec' in mn: dst |= {('s', 'exec')}; src |= {('s', 'exec')}
    I['dst'], I['src'] = dst, src
    if I['mfma']:
        I['passes'] = 8 if '32x32' in mn else 4
        I['A'], I['B'], I['C'] = R[1], R[2], R[3]
    I['ws'] = 1
    if mn == 's_nop': I['ws'] = int(ops[0], 0) + 1
    return I

def need(p, c):
    n = 0
    vd = {r for r in p['dst'] if r[0] in 'va'}
    sd = {r for r in p['dst'] if r[0] == 's'}
    if p['valu']:
        if vd & c['src']:
            if c['dpp']: n = max(n, 2)
            if c['mfma']: n = max(n, 2)
            if c['base'] in ('v_readlane_b32', 'v_readfirstlane_b32'): n = max(n, 1)
            if c['base'].startswith('v_permlane'): n = max(n, 2)
            if p['trans'] and (c['valu'] or c['mfma']) and not c['trans']: n = max(n, 1)
            if p['trans'] and (c['vmem'] or c['ds']): n = max(n, 1)
        if p['dot'] and (vd & (c['src'] | c['dst'])):
            same = c['base'] == p['base']
            if same:
                if len(c['ops']) >= 3 and (vd & (regs(c['ops'][1]) | regs(c['ops'][2]))): n = max(n, 3)
            else: n = max(n, 3)
        if sd & c['src']:
            if c['vmem']: n = max(n, 5)
            if c['valu'] or c['mfma']:
                if c['base'] in ('v_readlane_b32', 'v_writelane_b32'): n = max(n, 4)
                else: n = max(n, 2)
            if ('s', 'exec') in sd and c['dpp']: n = max(n, 5)
        if ('s', 'exec') in sd:
            if c['mfma']: n = max(n, 4)
            if c['dpp']: n = max(n, 5)
            if c['base'] in ('v_readlane_b32', 'v_readfirstlane_b32', 'v_writelane_b32') or c['base'].startswith('v_permlane'): n = max(n, 4)
    if p['mfma']:
        P = p['passes']
        d = p['dst']
        if c['mfma']:
            if d & (c['A'] | c['B']): n = max(n, 8 if P == 4 else 12)
            if d & c['C']:
                if not (c['C'] == d and c['passes'] == P): n = max(n, 6 if P == 4 else 10)
            elif d & c['dst']: n = max(n, 6 if P == 4 else 10)
        elif c['valu'] or c['vmem'] or c['ds']:
            if d & (c['src'] | c['dst']): n = max(n, 8 if P == 4 else 12)
            if c['valu'] and (p['C'] & c['dst']): n = max(n, 3 if P == 4 else 7)
    if p['vmem'] and p.get('wide_store'):
        if p['sdata'] & c['dst']: n = max(n, 2)
    if p['salu'] and ('s', 'm0') in p['dst'] and c['vmem'] and c.get('lds'): n = max(n, 1)
    if p['salu'] and ('s', 'exec') in p['dst'] and c['dpp']: n = max(n, 0)
    return n

def lint(text):
    lines = text.split('\n')
    ins = []; labels = {}
    for ln, l in enumerate(lines):
        s = l.split(';')[0].strip()
        if s.endswith(':') and not s.startswith('.'):
            labels[s[:-1]] = len(ins); continue
        I = parse(l)
        if I: I['ln'] = ln + 1; ins.append(I)
    probs = []
    W = 20
    def check_seq(seq):
        for j in range(len(seq)):
            c = seq[j]; dist = 0
            for i in range(j - 1, max(-1, j - W - 1), -1):
                p = seq[i]
                n = need(p, c)
                if n > dist:
                    probs.append((p['ln'], c['ln'], n, dist, p['line'], c['line']))
                dist += p['ws']
                if dist >= 13: break
    segs = []; cur = []
    for I in ins:
        cur.append(I)
        if I['mn'] in ('s_branch', 's_endpgm'): segs.append(cur); cur = []
    if cur: segs.append(cur)
    for s in segs: check_seq(s)
    for k, I in enumerate(ins):
        if I['mn'].startswith(('s_cbranch', 's_branch')):
            t = labels.get(I['ops'][0])
            if t is None: continue
            check_seq(ins[max(0, k - W):k + 1] + ins[t:t + W])
    seen = set(); out = []
    for p in probs:
        if (p[0], p[1]) not in seen:
            seen.add((p[0], p[1])); out.append(p)
    return out
```

```python
from asmlib import vr, sr
import gen2 as G
from gen2 import *

def rows_to_ws(a, PT, T, L_Y, ws_base, srd_ws, tag):
    a(f's_cmp_ge_u32 s{S_W}, 4\ns_cbranch_scc1 L_{tag}_yskip')
    a(f'v_lshlrev_b32 v{T}, 4, v0')
    for w in range(8):
        a(f'ds_read_b128 {vr(PT+4*w,4)}, v{T} offset:{L_Y + 4096*w}')
    row_addr(a, T + 1, T + 2, ws_base)
    a(f'v_mov_b32 v{T+2}, 0xffffff00')
    for w in range(1, 8):
        a(f's_waitcnt lgkmcnt({7-w})')
        for k in range(4):
            a(f'v_add_f32 v{PT+k}, v{PT+k}, v{PT+4*w+k}')
    tag24(a, PT, T + 2)
    a(f'buffer_store_dwordx4 {vr(PT,4)}, v{T+1}, s[{srd_ws}:{srd_ws+3}], 0 offen sc1')
    a.label(f'L_{tag}_yskip')

def row_addr(a, v, t, ws_base):
    a(f'v_bfe_u32 v{v}, v0, 7, 1')
    a(f'v_lshlrev_b32 v{v}, 16, v{v}')
    a(f'v_and_b32 v{t}, 127, v0')
    a(f'v_lshl_add_u32 v{v}, v{t}, 4, v{v}')
    a(f's_lshl_b32 s63, s{S_H}, 11\ns_add_u32 s63, s63, {ws_base:#x}')
    a(f'v_add_u32 v{v}, s63, v{v}')

def final_addr(a, VA, VO, t, ws_base, out_col):
    a(f'v_bfe_u32 v{VA}, v{V_LANE}, 2, 3')
    a(f'v_lshlrev_b32 v{VA}, 11, v{VA}')
    a(f'v_and_b32 v{t}, 3, v{V_LANE}')
    a(f'v_lshrrev_b32 v{VO}, 5, v{V_LANE}')
    a(f'v_lshl_add_u32 v{t}, v{VO}, 2, v{t}')
    a(f'v_lshl_add_u32 v{VA}, v{t}, 4, v{VA}')
    a(f's_lshr_b32 s62, s{S_H}, 4\ns_and_b32 s63, s{S_H}, 15')
    a(f's_lshl_b32 s60, s62, 16\ns_lshl_b32 s61, s63, 7\ns_add_u32 s60, s60, s61\ns_add_u32 s60, s60, {ws_base:#x}')
    a(f'v_add_u32 v{VA}, s60, v{VA}')
    a(f's_lshl_b32 s60, s62, 11\ns_lshl_b32 s61, s63, 6\ns_add_u32 s60, s60, s61\ns_add_u32 s60, s60, {out_col*2}')
    a(f'v_lshl_add_u32 v{VO}, v{t}, 3, s60')

def final_sum(a, cfg, n, SETS, Y, VA, VO, T, srd_ws, tag, sleep, dry=None):
    a('s_mov_b32 s66, 0x4000\ns_mov_b32 s67, 0x8000\ns_mov_b32 s65, 0xc000')
    def load(j):
        for k in range(4):
            so = ('0', 's66', 's67', 's65')[k]
            a(f'buffer_load_dwordx4 {vr(SETS+16*j+4*k,4)}, v{VA}, s[{srd_ws}:{srd_ws+3}], {so} offen sc1')
    def check(j, behind):
        for k in range(4):
            a(f's_waitcnt vmcnt({behind + 3 - k})')
            untag(a, Y + (4 if k else 0), T, k == 0, src=SETS + 16*j + 4*k)
            if k:
                for i in range(4): a(f'v_add_f32 v{Y+i}, v{Y+i}, v{Y+4+i}')
        bad_tags(a, T)
        for i in range(4):
            a(f'v_add_f32_dpp v{Y+i}, v{Y+i}, v{Y+i} row_ror:8 row_mask:0xf bank_mask:0xf')
    poll_sets(a, cfg, n, 4, load, check, sleep, tag + 'f')
    for i in range(4):
        a(f'v_add_f32_dpp v{Y+i}, v{Y+i}, v{Y+i} row_ror:4 row_mask:0xf bank_mask:0xf')
    for i in range(4): a(f'v_mov_b32 v{T+i}, v{Y+i}')
    for i in range(4): a(f'v_permlane16_swap_b32 v{Y+i}, v{T+i}')
    for i in range(4): a(f'v_add_f32 v{Y+i}, v{Y+i}, v{T+i}')
    a(f'v_cvt_pk_bf16_f32 v{Y}, v{Y}, v{Y+1}')
    a(f'v_cvt_pk_bf16_f32 v{Y+1}, v{Y+2}, v{Y+3}')
    if dry: a(f's_cmp_lg_u32 s{dry[0]}, 0\ns_cbranch_scc1 {dry[1]}')
    a('s_mov_b32 exec_lo, 15\ns_mov_b32 exec_hi, 15')
    a(f'global_store_dwordx2 v{VO}, {vr(Y,2)}, s[{P_OUT}:{P_OUT+1}]')
    a('s_mov_b64 exec, -1')
    span_mark(a, cfg, True)

def project(a, O, T, AOP, Y, Wr):
    for s_ in range(4):
        a(f'v_cvt_pk_bf16_f32 v{T+s_}, v{O+s_}, v{O+s_}')
    for s_ in range(4):
        for k in range(4):
            a(f'v_and_b32 v{AOP+4*s_+k}, v{T+s_}, v{V_MASK+k}')
    for s_ in range(4):
        for cb in range(4):
            c = '0' if s_ == 0 else vr(Y+4*cb, 4)
            a(f'v_mfma_f32_16x16x32_bf16 {vr(Y+4*cb,4)}, {vr(AOP+4*s_,4)}, {vr(Wr+16*s_+4*cb,4)}, {c}')

def role_W(a, cfg):
    L_QP, L_QB, L_CT, L_YB = 0, 8192, 9216, 18432
    L_CC = L_YB
    SRD_0, SRD_1, SRD_X, SRD_WS = 40, 44, 48, 52
    V_ZERO, V_OFF0, V_OFF1 = 8, 9, 10
    V_X, V_Q, V_A, V_Y, V_T = 12, 20, 28, 44, 60
    V_W0, V_W1, V_TMP = 64, 128, 192
    def flag_q():
        a(f's_lshl_b32 s62, s{S_H}, 7\ns_add_u32 s62, s62, {WS_FQ:#x}')
        a(f'v_mov_b32 v{V_TMP}, s62\nv_mov_b32 v{V_TMP+1}, s{S_TAG}')
        a('s_mov_b64 exec, 1')
        a('s_waitcnt vmcnt(0)')
        a(f'buffer_store_dword v{V_TMP+1}, v{V_TMP}, s[{SRD_WS}:{SRD_WS+3}], 0 offen sc1')
        a('s_mov_b64 exec, -1')
    a.label('L_roleW')
    if cfg.skipB & 1:
        a(f'v_mov_b32 v{V_ZERO}, 0')
        srd(a, SRD_WS, P_WS, nrec=0x1000000)
        load_nonce(a)
        a('s_waitcnt lgkmcnt(0)')
        make_tag(a)
        a(f's_cmp_lg_u32 s{S_W}, 0\ns_cbranch_scc1 L_W_q')
        flag_q()
        a.label('L_W_q')
        if cfg.wr:
            kind, nw, sl, cnt, stride, lanes = cfg.wr.split(',')
            a(f's_cmp_lg_u32 s{S_W}, 0\ns_cbranch_scc1 L_wr_end')
            a(f's_cmp_ge_u32 s{S_H}, {nw}\ns_cbranch_scc1 L_wr_end')
            a(f's_mul_i32 s62, s{S_H}, {0x21100}\ns_add_u32 s62, s62, 0x900000')
            a(f'v_lshl_add_u32 v{V_TMP}, v{V_LANE}, 4, s62')
            a(f's_mov_b64 exec, {(1 << int(lanes)) - 1 if int(lanes) < 64 else -1}')
            a('s_mov_b32 s64, 0')
            a.label('L_wr')
            op = {'st': f'buffer_store_dwordx4 {vr(V_TMP+4,4)}', 'at': f'buffer_atomic_add v{V_TMP+4}', 'ld': f'buffer_load_dwordx4 {vr(V_TMP+8,4)}'}[kind[:2]]
            a(f'{op}, v{V_TMP}, s[{SRD_WS}:{SRD_WS+3}], 0 offen {kind[2:].replace("+", " ")}')
            a(f'v_add_u32 v{V_TMP}, {stride}, v{V_TMP}')
            a(f's_sleep {sl}')
            a('s_waitcnt vmcnt(8)')
            a(f's_add_u32 s64, s64, 1\ns_cmp_lt_u32 s64, {cnt}\ns_cbranch_scc1 L_wr')
            a.label('L_wr_end')
        a('s_endpgm')
        return
    a(f's_lshl_b32 s60, s{S_H}, 8')
    a(f's_sub_u32 s61, {512*8192:#x}, s60')
    srd(a, SRD_0, P_BWQ, off_s=60, nrec_s=61)
    srd(a, SRD_1, P_BWUK, off_s=60, nrec_s=61)
    srd(a, SRD_X, P_BX, nrec=2048)
    x_loads(a, SRD_X, V_X, V_TMP)
    rows_voff(a, V_OFF0)
    slice_loads(a, SRD_0, V_OFF0, V_W0, cfg.bpol, 'rows', cfg.wthr0)
    stamp(a, cfg, 0)
    a(f'v_mov_b32 v{V_ZERO}, 0')
    srd(a, SRD_WS, P_WS, nrec=0x1000000)
    load_nonce(a)
    lane_masks(a, V_TMP)
    a('s_barrier')
    a('s_waitcnt vmcnt(16)')
    def wuk_load(s_):
        if cfg.wthr1: a(f's_waitcnt vmcnt({cfg.wthr1 - 1})')
        a(f's_xor_b32 s62, s{S_WX}, {s_*8192}')
        a(f'buffer_load_dwordx4 {vr(V_W1+4*s_,4)}, v{V_OFF0}, s[{SRD_1}:{SRD_1+3}], s62 offen {cfg.bpol}')
    rowcomb(a, V_X, V_W0, V_Y, V_A, V_TMP, 0, after=wuk_load)
    q_reduce(a, V_Y, V_TMP, L_QP, L_QB, 'W')
    a(f'v_lshlrev_b32 v{V_TMP+2}, 4, v{V_C}')
    a(f'ds_read_b128 {vr(V_Q,4)}, v{V_TMP+2} offset:{L_QB}')
    a(f'ds_read_b128 {vr(V_Q+4,4)}, v{V_TMP+2} offset:{L_QB+256}')
    stamp(a, cfg, 1)
    R0, R1 = V_TMP + 8, V_TMP + 9
    a(f'v_mov_b32 v{R0}, 0\nv_mov_b32 v{R1}, 0')
    a(f's_lshr_b32 s62, s{S_WX}, 13')
    a(f'v_xor_b32 v{V_TMP+10}, s62, v{V_C}')
    a('s_waitcnt lgkmcnt(0)')
    make_tag(a)
    for i in range(0, 16, 2):
        a(f's_waitcnt vmcnt({14 - i})')
        T = [V_T + n for n in range(4)]
        for k in range(4):
            for n in range(4):
                wreg = V_W1 + 4*(i + n//2) + k
                q = V_Q + 4*(n % 2) + k
                c = '0' if k == 0 else f'v{T[n]}'
                a(f'v_dot2_f32_bf16 v{T[n]}, v{wreg}, v{q}, {c}')
        for st in (8, 4, 2, 1):
            for n in range(4):
                a(f'v_add_f32_dpp v{T[n]}, v{T[n]}, v{T[n]} row_ror:{st} row_mask:0xf bank_mask:0xf')
        for n in range(4):
            if n % 2 == 0:
                a(f'v_cmp_eq_u32 vcc, {i + n//2}, v{V_TMP+10}')
                a('s_nop 1')
            r = R0 if n % 2 == 0 else R1
            a(f'v_cndmask_b32 v{r}, v{r}, v{T[n]}, vcc')
    a(f'v_cvt_pk_bf16_f32 v{R0}, v{R0}, v{R0}')
    a(f'v_cvt_pk_bf16_f32 v{R1}, v{R1}, v{R1}')
    a(f'v_lshlrev_b32 v{V_TMP}, 1, v0')
    a(f'ds_write_b16 v{V_TMP}, v{R0} offset:{L_QP}')
    a(f'ds_write_b16 v{V_TMP}, v{R1} offset:{L_QP + 1024}')
    a('s_waitcnt lgkmcnt(0)\ns_barrier')
    a(f's_cmp_lg_u32 s{S_W}, 0\ns_cbranch_scc1 L_W_q')
    a(f'v_lshlrev_b32 v{V_TMP}, 4, v{V_LANE}')
    a(f'ds_read_b128 {vr(V_Q,4)}, v{V_TMP} offset:{L_QP}')
    a(f'ds_read_b128 {vr(V_Q+4,4)}, v{V_TMP} offset:{L_QP + 1024}')
    a(f's_lshl_b32 s62, s{S_H}, 10\ns_add_u32 s62, s62, {WS_QABS:#x}\ns_add_u32 s63, s62, {32*1024}')
    a('s_waitcnt lgkmcnt(0)')
    a(f'buffer_store_dwordx4 {vr(V_Q,4)}, v{V_TMP}, s[{SRD_WS}:{SRD_WS+3}], s62 offen sc1')
    a(f'buffer_store_dwordx4 {vr(V_Q+4,4)}, v{V_TMP}, s[{SRD_WS}:{SRD_WS+3}], s63 offen sc1')
    flag_q()
    a.label('L_W_q')
    stamp(a, cfg, 2)
    a(f's_lshl_b32 s60, s{S_H}, 8')
    a(f's_sub_u32 s61, {512*8192:#x}, s60')
    srd(a, SRD_0, P_BWUV, off_s=60, nrec_s=61)
    a(f's_lshl_b32 s60, s{S_H}, 17\ns_mov_b32 s61, {128*1024:#x}')
    srd(a, SRD_1, P_BWO, off_s=60, nrec_s=61)
    wo_voff(a, V_OFF1)
    slice_loads(a, SRD_0, V_OFF0, V_W0, cfg.bpol, 'rows', cfg.wthr)
    slice_loads(a, SRD_1, V_OFF1, V_W1, cfg.bpol, 'wo', cfg.wthr)
    a('s_waitcnt vmcnt(0)')
    final_addr(a, V_OFF0, V_OFF1, V_TMP, WS_YB, 512)
    stamp(a, cfg, 3)
    if cfg.skipB & 2: a('s_branch L_W_end')
    a(f's_lshl_b32 s63, s{S_H}, 4\ns_add_u32 s63, s63, {WS_CSTAT:#x}')
    a(f'v_lshl_add_u32 v{V_TMP}, v{V_LANE}, 9, s63')
    wait_flags(a, cfg, lambda: a(f'buffer_load_dwordx4 {vr(V_TMP+4,4)}, v{V_TMP}, s[{SRD_WS}:{SRD_WS+3}], 0 offen sc1'),
               lambda: (untag(a, V_TMP + 4, V_TMP + 1), bad_tags(a, V_TMP + 1)), 'Wc')
    stamp(a, cfg, 4)
    S_B, S_Q4 = 35, 36
    a(f's_lshr_b32 s{S_B}, s{S_W}, 2')
    a(f's_and_b32 s{S_Q4}, s{S_W}, 3')
    a(f's_lshl_b32 s62, s{S_B}, 13\ns_add_u32 s63, s63, s62')
    a(f'v_lshl_add_u32 v{V_TMP}, v{V_C}, 9, s63')
    a(f'buffer_load_dwordx4 {vr(V_TMP+4,4)}, v{V_TMP}, s[{SRD_WS}:{SRD_WS+3}], 0 offen sc1')
    a(f's_lshl_b32 s62, s{S_B}, 5\ns_add_u32 s62, s62, s{S_H}')
    a(f's_lshl_b32 s63, s62, 14\ns_add_u32 s63, s63, {WS_CPART:#x}')
    a(f's_lshl_b32 s64, s{S_Q4}, 12\ns_add_u32 s63, s63, s64')
    a(f'v_lshl_add_u32 v{V_TMP+1}, v{V_LANE}, 4, s63')
    PT = V_TMP + 8
    for kk in range(4):
        a(f'buffer_load_dwordx4 {vr(PT+4*kk,4)}, v{V_TMP+1}, s[{SRD_WS}:{SRD_WS+3}], 0 offen offset:{kk*1024} sc1')
    a('s_mov_b32 s60, 0x07060302')
    a('s_waitcnt vmcnt(4)')
    m, l, M, e = V_TMP + 2, V_TMP + 3, V_TMP + 4, V_TMP + 5
    a(f'v_perm_b32 v{m}, v{V_TMP+4}, v{V_TMP+5}, s60')
    a(f'v_perm_b32 v{l}, v{V_TMP+6}, v{V_TMP+7}, s60')
    a(f'v_mov_b32 v{M}, v{m}')
    for st in (8, 4, 2, 1):
        a.nop(2)
        a(f'v_max_f32_dpp v{M}, v{M}, v{M} row_ror:{st} row_mask:0xf bank_mask:0xf')
    a(f'v_sub_f32 v{e}, v{m}, v{M}')
    a(f'v_exp_f32 v{e}, v{e}')
    a('s_nop 0')
    a(f'v_mul_f32 v{l}, v{l}, v{e}')
    for st in (8, 4, 2, 1):
        a.nop(2)
        a(f'v_add_f32_dpp v{l}, v{l}, v{l} row_ror:{st} row_mask:0xf bank_mask:0xf')
    a(f'v_rcp_f32 v{l}, v{l}')
    a('s_nop 0')
    a(f'v_mul_f32 v{e}, v{e}, v{l}')
    a(f's_lshl_b32 s64, s{S_Q4}, 2')
    for kk in range(4):
        a(f's_add_u32 s65, s64, {kk}')
        a(f'v_readlane_b32 s{66+kk}, v{e}, s65')
    ACC = V_TMP + 40
    UP = PT + 16
    for kk in range(4):
        a(f's_waitcnt vmcnt({3-kk})')
        for k in range(4):
            a(f'v_lshlrev_b32 v{UP+2*k}, 16, v{PT+4*kk+k}')
            a(f'v_and_b32 v{UP+2*k+1}, 0xffff0000, v{PT+4*kk+k}')
        for k in range(8):
            if kk == 0: a(f'v_mul_f32 v{ACC+k}, s{66+kk}, v{UP+k}')
            else: a(f'v_fma_f32 v{ACC+k}, v{UP+k}, s{66+kk}, v{ACC+k}')
    a(f's_lshl_b32 s62, s{S_W}, 11')
    a(f'v_lshl_add_u32 v{V_TMP}, v{V_LANE}, 5, s62')
    a(f'ds_write_b128 v{V_TMP}, {vr(ACC,4)} offset:{L_CC}')
    a(f'ds_write_b128 v{V_TMP}, {vr(ACC+4,4)} offset:{L_CC+16}')
    a('s_waitcnt lgkmcnt(0)\ns_barrier')
    a(f'v_lshrrev_b32 v{V_TMP}, 3, v{V_C}')
    a(f'v_lshlrev_b32 v{V_TMP}, 13, v{V_TMP}')
    a(f'v_lshl_add_u32 v{V_TMP}, v{V_G}, 6, v{V_TMP}')
    a(f's_lshl_b32 s62, s{S_W}, 8\ns_lshr_b32 s63, s{S_WX}, 11\ns_add_u32 s62, s62, s63')
    a(f'v_add_u32 v{V_TMP}, s62, v{V_TMP}')
    for q4 in range(1, 4): a(f'v_xor_b32 v{V_TMP+q4}, {16*q4}, v{V_TMP}')
    for hf in range(2):
        for q4 in range(4):
            a(f'ds_read_b128 {vr(PT+16*hf+4*q4,4)}, v{V_TMP+q4} offset:{L_CC + 2048*hf}')
    a('s_waitcnt lgkmcnt(0)')
    for i in range(16):
        a(f'v_add_f32 v{PT+i}, v{PT+i}, v{PT+16+i}')
    for hf in range(2, 4):
        for q4 in range(4):
            a(f'ds_read_b128 {vr(PT+16+4*q4,4)}, v{V_TMP+q4} offset:{L_CC + 2048*hf}')
        a('s_waitcnt lgkmcnt(0)')
        for i in range(16):
            a(f'v_add_f32 v{PT+i}, v{PT+i}, v{PT+16+i}')
    for i in range(8):
        a(f'v_cvt_pk_bf16_f32 v{V_X+i}, v{PT+2*i}, v{PT+2*i+1}')
    rowcomb(a, V_X, V_W0, V_Y, V_A, V_TMP, 63)
    dtile_to_lds(a, V_Y, V_TMP, L_CT, 10, 9, 1)
    a('s_waitcnt lgkmcnt(0)\ns_barrier')
    a(f'v_lshrrev_b32 v{V_TMP}, 3, v{V_C}')
    a(f'v_lshlrev_b32 v{V_TMP}, 9, v{V_TMP}')
    a(f'v_lshl_add_u32 v{V_TMP}, v{V_G}, 4, v{V_TMP}')
    a(f's_lshl_b32 s62, s{S_W}, 6')
    a(f'v_add_u32 v{V_TMP}, s62, v{V_TMP}')
    for w in range(8):
        a(f'ds_read_b128 {vr(PT+4*w,4)}, v{V_TMP} offset:{L_CT + 1024*w}')
    for w in range(1, 8):
        a(f's_waitcnt lgkmcnt({7-w})')
        for k in range(4):
            a(f'v_add_f32 v{PT+k}, v{PT+k}, v{PT+4*w+k}')
    project(a, PT, V_T, V_A, V_Y, V_W1)
    dtile_to_lds(a, V_Y, V_TMP, L_YB, 12, 11, 4)
    a('s_waitcnt lgkmcnt(0)\ns_barrier')
    rows_to_ws(a, PT, V_TMP, L_YB, WS_YB, SRD_WS, 'W')
    stamp(a, cfg, 5)
    a(f's_cmp_lg_u32 s{S_W}, 4\ns_cbranch_scc1 L_W_end')
    a('s_mov_b32 s64, 0')
    final_sum(a, cfg, 1, V_W0, V_W0 + 16, V_OFF0, V_OFF1, V_TMP, SRD_WS, 'W', cfg.psleep2)
    stamp(a, cfg, 6)
    a.label('L_W_end')
    stamp_flush(a, cfg)
    a('s_endpgm')

def role_C(a, cfg):
    TS = 1056
    BUF = 64 * TS
    L_TMAX, L_P = 0, 512
    PS = 144
    L_T0 = 5120
    L_T1 = L_T0 + BUF
    L_QP = L_T1 + BUF
    assert L_P + 32*PS <= L_T0 and L_QP + 8192 <= LDS_BYTES
    SRD_C, SRD_WS, SRD_W, SRD_X = 40, 44, 68, 72
    S_B, S_KB, S_HB, S_LB, S_IT, S_BUF = 35, 36, 37, 38, 39, 48
    S_LO, S_HI, S_STG, S_TN, S_TX = 49, 51, 52, 53, 54
    V_ZERO, V_COFF, V_SA, V_TA, V_PW, V_PR, V_TW, V_TRS, V_TRP = 8, 9, 10, 11, 12, 13, 14, 15, 16
    V_SC, V_MS, V_MP, V_LS, V_AL = 17, 18, 19, 20, 21
    V_T = 24
    V_SD = 28
    V_Q = 32
    V_ACC = 96
    V_SF = 128
    V_PB = 192
    V_TF = 128
    V_STG = 208
    V_TMP = 240
    V_STA, V_STW = 22, 23
    def wait_q(tag):
        a(f'v_lshlrev_b32 v{V_TMP}, 7, v{V_LANE}')
        a(f'v_add_u32 v{V_TMP}, {WS_FQ:#x}, v{V_TMP}')
        wait_flags(a, cfg, lambda: a(f'buffer_load_dword v{V_TMP+1}, v{V_TMP}, s[{SRD_WS}:{SRD_WS+3}], 0 offen sc1'),
                   lambda: a(f'v_cmp_ne_u32 vcc, s{S_TAG}, v{V_TMP+1}'), tag)
    a.label('L_roleC')
    V_X, V_A, V_Y = V_Q, V_Q + 8, V_Q + 16
    a(f's_lshl_b32 s60, s{S_H}, 8')
    a(f's_sub_u32 s61, {512*8192:#x}, s60')
    srd(a, SRD_W, P_AWQ, off_s=60, nrec_s=61)
    srd(a, SRD_X, P_AX, nrec=2048)
    x_loads(a, SRD_X, V_X, V_TMP)
    rows_voff(a, V_COFF)
    slice_loads(a, SRD_W, V_COFF, V_SF, cfg.wqpol, 'rows', cfg.qthr)
    stamp(a, cfg, 0)
    load_nonce(a)
    srd(a, SRD_WS, P_WS, nrec=0x1000000)
    if cfg.deal == 'glob':
        a(f's_cmp_lg_u32 s{S_W}, 6\ns_cbranch_scc1 L_C_ctr')
        a(f'v_mov_b32 v{V_PB}, -1')
        a(f's_lshl_b32 s62, s{S_H}, 13\ns_add_u32 s62, s62, {WS_OA + 6*1024:#x}')
        a(f'v_lshl_add_u32 v{V_TMP}, v{V_LANE}, 7, s62')
        a(f's_mov_b64 exec, {0xff if cfg.col else 1}')
        a(f'buffer_store_dword v{V_PB}, v{V_TMP}, s[{SRD_WS}:{SRD_WS+3}], 0 offen sc1')
        a('s_mov_b64 exec, -1')
        a.label('L_C_ctr')
    lane_masks(a, V_TMP + 2)
    a(f'v_mov_b32 v{V_ZERO}, 0')
    a(f's_lshr_b32 s{S_B}, s{S_H}, 4')
    a(f's_lshr_b32 s{S_KB}, s{S_W}, 1\ns_and_b32 s{S_HB}, s{S_W}, 1')
    TSH = 17 if cfg.cilv else 16
    a(f's_lshr_b32 s60, s{S_H}, {TSH - 16}\ns_lshl_b32 s60, s60, {TSH + 3}')
    a(f's_mov_b32 s61, {8 << TSH:#x}')
    srd(a, SRD_C, P_BC, off_s=60, nrec_s=61)
    dtile_addr(a, V_TMP + 2, 10, 9)
    a(f'v_add_u32 v{V_TMP+2}, {L_QP}, v{V_TMP+2}')
    a(f'v_lshlrev_b32 v{V_TMP+3}, 4, v{V_LANE}')
    a(f's_lshl_b32 s62, s{S_H}, 10\ns_add_u32 s62, s62, {WS_QA:#x}')
    a(f'v_add_u32 v{V_TMP+4}, s62, v{V_TMP+3}')
    a(f'v_add_u32 v{V_TMP+3}, {L_QP}, v{V_TMP+3}')
    a('s_waitcnt vmcnt(16) lgkmcnt(0)')
    make_tag(a)
    a(f'v_mov_b32 v{V_TMP+5}, s{S_TAG}')
    rowcomb(a, V_X, V_SF, V_Y, V_A, V_TMP, 0)
    a.nop(8)
    a(f'ds_write_b128 v{V_TMP+2}, {vr(V_Y,4)}')
    a('s_waitcnt lgkmcnt(0)\ns_barrier')
    a(f's_cmp_lg_u32 s{S_W}, 0\ns_cbranch_scc1 L_C_qs')
    for w in range(8):
        a(f'ds_read_b128 {vr(V_SF+4*w,4)}, v{V_TMP+3} offset:{1024*w}')
    a('s_mov_b32 s60, 0x05040100\ns_mov_b32 s61, 0x07060302')
    for w in range(1, 8):
        a(f's_waitcnt lgkmcnt({7-w})')
        for k in range(4):
            a(f'v_add_f32 v{V_SF+k}, v{V_SF+k}, v{V_SF+4*w+k}')
    a(f'v_cvt_pk_bf16_f32 v{V_SF}, v{V_SF}, v{V_SF+1}')
    a(f'v_cvt_pk_bf16_f32 v{V_SF+1}, v{V_SF+2}, v{V_SF+3}')
    for k in range(4):
        a(f'v_perm_b32 v{V_SF+4+k}, v{V_SF+k//2}, v{V_TMP+5}, s{60+k%2}')
    a(f'buffer_store_dwordx4 {vr(V_SF+4,4)}, v{V_TMP+4}, s[{SRD_WS}:{SRD_WS+3}], 0 offen sc1')
    a.label('L_C_qs')
    stamp(a, cfg, 1)
    HI = 32 if cfg.cblk else 4
    WR = 4 if cfg.cblk else 8
    a(f'v_lshlrev_b32 v{V_COFF}, 4, v{V_LANE}')
    a(f's_mul_i32 s62, s{S_W}, {WR*1024}')
    a(f'v_add_u32 v{V_COFF}, s62, v{V_COFF}')
    a(f's_mul_i32 s{S_LB}, s{S_W}, {WR*TS}')
    if cfg.cilv: a(f's_and_b32 s{S_TX}, s{S_H}, {3 if cfg.crot else 1}\ns_lshl_b32 s{S_TX}, s{S_TX}, 16')
    elif cfg.crot: a(f's_and_b32 s{S_TX}, s{S_H}, 3\ns_lshl_b32 s{S_TX}, s{S_TX}, 17')
    else: a(f's_mov_b32 s{S_TX}, 0')
    a(f's_mov_b32 s{S_TN}, 0')
    assert not cfg.cilv
    a(f's_lshl_b32 s60, s{S_H}, 17\ns_mov_b32 s61, {128*1024:#x}')
    srd(a, SRD_W, P_AWO, off_s=60, nrec_s=61)
    def next_tile():
        a(f's_cmp_lt_u32 s{S_TN}, {8 << TSH:#x}')
        for k in range(3): a(f's_cselect_b32 s{SRD_C+k}, s{SRD_C+k}, s{SRD_W+k}')
        a(f's_cselect_b32 s{S_TX}, s{S_TX}, 0')
        a(f's_and_b32 s{S_LO}, s{S_TN}, {7 << TSH:#x}')
        a(f's_xor_b32 s{S_LO}, s{S_LO}, s{S_TX}')
        a(f's_add_u32 s{S_HI}, s{S_LO}, {HI*1024}')
        a(f's_add_u32 s{S_TN}, s{S_TN}, {1 << TSH:#x}')
    def lrow(i): return (i // 4) * HI + i % 4
    def dma():
        next_tile()
        for i in range(8):
            lo = i % 4
            if cfg.cthr: a(f's_waitcnt vmcnt({cfg.cthr-1})')
            a(f's_add_u32 m0, s50, {lrow(i)*TS - lo*1024}')
            a('s_nop 0')
            a(f'buffer_load_dwordx4 v{V_COFF}, s[{SRD_C}:{SRD_C+3}], s{S_LO if i < 4 else S_HI} offen offset:{lo*1024} {cfg.cpol} lds')
    if cfg.skipB & 2: a(f's_mov_b32 s{S_TN}, {8 << TSH:#x}')
    a(f's_add_u32 s50, s{S_LB}, {L_T0}'); dma()
    if not cfg.skipB & 2:
        a(f's_add_u32 s50, s{S_LB}, {L_T1}'); dma()
    def stage_load(i):
        a(f'buffer_load_dwordx4 {vr(V_STG+4*i,4)}, v{V_COFF}, s[{SRD_C}:{SRD_C+3}], s{S_LO if i < 4 else S_HI} offen offset:{(i%4)*1024} {cfg.cpol}')
    next_tile()
    for i in range(8):
        if cfg.cthr: a(f's_waitcnt vmcnt({cfg.cthr-1})')
        stage_load(i)
    a(f's_add_u32 s62, s{S_LB}, {L_T0}')
    a(f'v_lshl_add_u32 v{V_STA}, v{V_LANE}, 4, s62')
    a(f's_lshl_b32 s62, s{S_KB}, 4')
    a(f'v_add_u32 v{V_TMP}, s62, v{V_C}')
    a(f'v_mul_u32_u24 v{V_SA}, {TS}, v{V_TMP}')
    a(f'v_lshl_add_u32 v{V_SA}, v{V_G}, 4, v{V_SA}')
    a(f'v_add_u32 v{V_SA}, {L_T0}, v{V_SA}')
    a(f'v_lshrrev_b32 v{V_TMP}, 1, v{V_G}')
    a(f'v_lshlrev_b32 v{V_TMP}, 3, v{V_TMP}')
    a(f'v_lshrrev_b32 v{V_TMP+1}, 2, v{V_C}')
    a(f'v_add_u32 v{V_TMP}, v{V_TMP}, v{V_TMP+1}')
    a(f'v_mul_u32_u24 v{V_TA}, {TS}, v{V_TMP}')
    a(f'v_and_b32 v{V_TMP}, 1, v{V_G}')
    a(f'v_lshl_add_u32 v{V_TA}, v{V_TMP}, 5, v{V_TA}')
    a(f'v_and_b32 v{V_TMP}, 3, v{V_C}')
    a(f'v_lshl_add_u32 v{V_TA}, v{V_TMP}, 3, v{V_TA}')
    a(f's_lshl_b32 s62, s{S_W}, 7\ns_add_u32 s62, s62, {L_T0}')
    a(f'v_add_u32 v{V_TA}, s62, v{V_TA}')
    a(f's_lshl_b32 s62, s{S_HB}, 4')
    a(f'v_add_u32 v{V_TMP}, s62, v{V_C}')
    a(f'v_mul_u32_u24 v{V_PW}, {PS}, v{V_TMP}')
    a(f'v_lshl_add_u32 v{V_PW}, v{V_G}, 3, v{V_PW}')
    a(f's_lshl_b32 s62, s{S_KB}, 5')
    a(f'v_add_u32 v{V_PW}, s62, v{V_PW}')
    a(f'v_lshlrev_b32 v{V_TRS}, 4, v{V_TMP}')
    a(f's_lshl_b32 s62, s{S_KB}, 2')
    a(f'v_add_u32 v{V_TW}, s62, v{V_TRS}')
    a(f'v_and_b32 v{V_TMP}, 31, v{V_LANE}')
    a(f'v_mul_u32_u24 v{V_PR}, {PS}, v{V_TMP}')
    a(f'v_lshrrev_b32 v{V_TMP+1}, 5, v{V_LANE}')
    a(f'v_lshl_add_u32 v{V_PR}, v{V_TMP+1}, 4, v{V_PR}')
    a(f'v_lshlrev_b32 v{V_TRP}, 4, v{V_TMP}')
    a(f'v_mov_b32 v{V_SC}, {f2u(SCALE):#x}')
    a(f'v_mov_b32 v{V_MS}, 0xff800000\nv_mov_b32 v{V_MP}, 0xff800000\nv_mov_b32 v{V_LS}, 0')
    for k in range(32): a(f'v_mov_b32 v{V_ACC+k}, 0')
    wait_q('Cq')
    if cfg.skipB & 2: a('s_waitcnt vmcnt(0)\ns_branch L_C_tail')
    stamp(a, cfg, 2)
    a(f's_lshl_b32 s62, s{S_B}, 5\ns_lshl_b32 s63, s{S_HB}, 4\ns_add_u32 s62, s62, s63')
    a(f'v_add_u32 v{V_TMP}, s62, v{V_C}')
    a(f'v_lshlrev_b32 v{V_TMP}, 10, v{V_TMP}')
    a(f'v_lshl_add_u32 v{V_TMP}, v{V_G}, 4, v{V_TMP}')
    if WS_QABS: a(f'v_add_u32 v{V_TMP}, {WS_QABS:#x}, v{V_TMP}')
    for s_ in range(16):
        a(f'buffer_load_dwordx4 {vr(V_Q+4*s_,4)}, v{V_TMP}, s[{SRD_WS}:{SRD_WS+3}], 0 offen offset:{64*s_} sc1')
    a(f's_mov_b32 s{S_IT}, 0\ns_mov_b32 s{S_BUF}, 0')
    a('s_waitcnt vmcnt(0)')
    stamp(a, cfg, 3)
    a('.p2align 6')
    a.label('L_C_loop')
    a('s_waitcnt lgkmcnt(0)\ns_barrier')
    a(f's_mov_b32 s{S_STG}, 1')
    a(f's_cmp_eq_u32 s{S_IT}, 0\ns_cselect_b32 s{S_STG}, 0, s{S_STG}')
    a(f's_sub_u32 s50, {BUF}, s{S_BUF}')
    a(f'v_add_u32 v{V_STW}, s50, v{V_STA}')
    nstage = [0]
    def stage(rows):
        if not rows: return
        lab = f'L_C_st{nstage[0]}'; nstage[0] += 1
        a(f's_cmp_eq_u32 s{S_STG}, 0\ns_cbranch_scc1 {lab}')
        if rows[0] == 0: next_tile()
        for i in rows:
            a('s_waitcnt vmcnt(7)')
            a(f'ds_write_b128 v{V_STW}, {vr(V_STG+4*i,4)} offset:{lrow(i)*TS}')
            stage_load(i)
        a.label(lab)
    groups = [[0, 1], [2, 3], [4, 5], [6, 7]] if cfg.cspread else [list(range(8)), [], [], []]
    stage(groups[0])
    a(f'v_add_u32 v{V_TMP}, s{S_BUF}, v{V_SA}')
    a(f'v_add_u32 v{V_TMP+1}, s{S_BUF}, v{V_TA}')
    for s_ in range(16):
        a(f'ds_read_b128 {vr(V_SF+4*s_,4)}, v{V_TMP} offset:{64*s_}')
    for s_ in range(16):
        a(f's_waitcnt lgkmcnt({15-s_})')
        c = '0' if s_ == 0 else vr(V_SD, 4)
        a(f'v_mfma_f32_16x16x32_bf16 {vr(V_SD,4)}, {vr(V_SF+4*s_,4)}, {vr(V_Q+4*s_,4)}, {c}')
    stage(groups[1])
    a.nop(8)
    for i in range(4): a(f'v_mul_f32 v{V_T+i}, v{V_SD+i}, v{V_SC}')
    a(f'v_max3_f32 v{V_TMP+2}, v{V_T}, v{V_T+1}, v{V_T+2}')
    a(f'v_max_f32 v{V_TMP+2}, v{V_TMP+2}, v{V_T+3}')
    xrow_allreduce(a, 'v_max_f32', V_TMP+2, V_TMP+3)
    a('s_mov_b64 exec, 0xffff')
    a(f'ds_write_b32 v{V_TW}, v{V_TMP+2} offset:{L_TMAX}')
    a('s_mov_b64 exec, -1')
    a('s_waitcnt lgkmcnt(0)\ns_barrier')
    a(f'ds_read_b128 {vr(V_PB,4)}, v{V_TRS} offset:{L_TMAX}')
    a(f'ds_read_b128 {vr(V_PB+4,4)}, v{V_TRP} offset:{L_TMAX}')
    a('s_waitcnt lgkmcnt(1)')
    a(f'v_max3_f32 v{V_TMP+2}, v{V_PB}, v{V_PB+1}, v{V_PB+2}')
    a(f'v_max3_f32 v{V_TMP+2}, v{V_TMP+2}, v{V_PB+3}, v{V_MS}')
    a(f'v_sub_f32 v{V_AL}, v{V_MS}, v{V_TMP+2}')
    for i in range(4): a(f'v_sub_f32 v{V_T+i}, v{V_T+i}, v{V_TMP+2}')
    a(f'v_exp_f32 v{V_AL}, v{V_AL}')
    for i in range(4): a(f'v_exp_f32 v{V_T+i}, v{V_T+i}')
    a(f'v_mov_b32 v{V_MS}, v{V_TMP+2}')
    a(f'v_cvt_pk_bf16_f32 v{V_TMP+4}, v{V_T}, v{V_T+1}')
    a(f'v_cvt_pk_bf16_f32 v{V_TMP+5}, v{V_T+2}, v{V_T+3}')
    a(f'ds_write_b64 v{V_PW}, {vr(V_TMP+4,2)} offset:{L_P}')
    a(f'v_add_f32 v{V_T}, v{V_T}, v{V_T+1}')
    a(f'v_add_f32 v{V_T+2}, v{V_T+2}, v{V_T+3}')
    a(f'v_fma_f32 v{V_LS}, v{V_LS}, v{V_AL}, v{V_T}')
    a(f'v_add_f32 v{V_LS}, v{V_LS}, v{V_T+2}')
    a('s_waitcnt lgkmcnt(1)')
    a(f'v_max3_f32 v{V_TMP+2}, v{V_PB+4}, v{V_PB+5}, v{V_PB+6}')
    a(f'v_max3_f32 v{V_TMP+2}, v{V_TMP+2}, v{V_PB+7}, v{V_MP}')
    a(f'v_sub_f32 v{V_AL}, v{V_MP}, v{V_TMP+2}')
    a(f'v_exp_f32 v{V_AL}, v{V_AL}')
    a(f'v_mov_b32 v{V_MP}, v{V_TMP+2}')
    for k in range(32): a(f'v_mul_f32 v{V_ACC+k}, v{V_ACC+k}, v{V_AL}')
    stage(groups[2])
    a('s_waitcnt lgkmcnt(0)\ns_barrier')
    for t in range(4):
        a(f'ds_read_b128 {vr(V_PB+4*t,4)}, v{V_PR} offset:{L_P + 32*t}')
    for t in range(4):
        for cb in range(2):
            f = V_TF + 8*t + 4*cb
            off = t*16*TS + cb*64
            a(f'ds_read_b64_tr_b16 {vr(f,2)}, v{V_TMP+1} offset:{off}')
            a(f'ds_read_b64_tr_b16 {vr(f+2,2)}, v{V_TMP+1} offset:{off + 4*TS}')
    for t in range(4):
        a(f's_waitcnt lgkmcnt({12 - 4*t})')
        for cb in range(2):
            f = V_TF + 8*t + 4*cb
            a(f'v_mfma_f32_32x32x16_bf16 {vr(V_ACC+16*cb,16)}, {vr(f,4)}, {vr(V_PB+4*t,4)}, {vr(V_ACC+16*cb,16)}')
    stage(groups[3])
    a(f's_sub_u32 s{S_BUF}, {BUF}, s{S_BUF}')
    a(f's_add_u32 s{S_IT}, s{S_IT}, 1')
    if cfg.loopst:
        a(f's_add_u32 m0, s{S_IT}, 15')
        stamp(a, cfg, 'm0')
    a(f's_cmp_lt_u32 s{S_IT}, 8\ns_cbranch_scc1 L_C_loop')
    stamp(a, cfg, 4)
    xrow_allreduce(a, 'v_add_f32', V_LS, V_TMP+3)
    a('s_barrier')
    a('s_mov_b64 exec, 0xffff')
    a(f'ds_write_b32 v{V_TW}, v{V_LS} offset:{L_TMAX}')
    a('s_mov_b64 exec, -1')
    RS = 2064
    a(f'v_and_b32 v{V_TMP}, 31, v{V_LANE}')
    a(f'v_mul_u32_u24 v{V_TMP}, {RS}, v{V_TMP}')
    a(f'v_lshrrev_b32 v{V_TMP+1}, 5, v{V_LANE}')
    a(f'v_lshl_add_u32 v{V_TMP}, v{V_TMP+1}, 4, v{V_TMP}')
    a(f's_lshl_b32 s62, s{S_W}, 8\ns_add_u32 s62, s62, {L_T1}')
    a(f'v_add_u32 v{V_TMP}, s62, v{V_TMP}')
    a.nop(6)
    for cb in range(2):
        for k in range(4):
            a(f'ds_write_b128 v{V_TMP}, {vr(V_ACC+16*cb+4*k,4)} offset:{128*cb + 32*k}')
    a('s_waitcnt lgkmcnt(0)\ns_barrier')
    a(f's_mul_i32 s62, s{S_W}, {4*RS}\ns_add_u32 s62, s62, {L_T1}')
    a(f'v_lshl_add_u32 v{V_TMP}, v{V_LANE}, 5, s62')
    for r_ in range(4):
        for hf in range(2):
            a(f'ds_read_b128 {vr(V_SF+8*r_+4*hf,4)}, v{V_TMP} offset:{r_*RS + hf*16}')
    a(f's_lshl_b32 s62, s{S_B}, 5\ns_lshl_b32 s63, s{S_W}, 2\ns_add_u32 s62, s62, s63')
    a(f's_lshl_b32 s62, s62, 4\ns_and_b32 s63, s{S_H}, 15\ns_add_u32 s62, s62, s63')
    a(f's_lshl_b32 s62, s62, 10\ns_add_u32 s62, s62, {WS_CPART:#x}')
    a(f'v_lshl_add_u32 v{V_TMP+1}, v{V_LANE}, 4, s62')
    for r_ in range(4):
        a(f's_waitcnt lgkmcnt({6 - 2*r_})')
        for k in range(4):
            a(f'v_cvt_pk_bf16_f32 v{V_SF+32+4*r_+k}, v{V_SF+8*r_+2*k}, v{V_SF+8*r_+2*k+1}')
        a(f's_mov_b32 s63, {r_*16384}')
        a(f'buffer_store_dwordx4 {vr(V_SF+32+4*r_,4)}, v{V_TMP+1}, s[{SRD_WS}:{SRD_WS+3}], s63 offen sc1')
    a(f'ds_read_b128 {vr(V_PB,4)}, v{V_TRP} offset:{L_TMAX}')
    a(f's_lshl_b32 s63, s{S_H}, 9\ns_add_u32 s63, s63, {WS_CSTAT:#x}')
    a(f'v_lshl_add_u32 v{V_TMP}, v{V_LANE}, 4, s63')
    a(f'v_mov_b32 v{V_TMP+1}, 0xffff0000')
    a('s_waitcnt lgkmcnt(0)')
    a(f'v_add_f32 v{V_PB}, v{V_PB}, v{V_PB+1}')
    a(f'v_add_f32 v{V_PB+2}, v{V_PB+2}, v{V_PB+3}')
    a(f'v_add_f32 v{V_PB+4}, v{V_PB}, v{V_PB+2}')
    a(f'v_and_or_b32 v{V_PB}, v{V_MP}, v{V_TMP+1}, s{S_TB}')
    a(f'v_lshl_or_b32 v{V_PB+1}, v{V_MP}, 16, s{S_TB+1}')
    a(f'v_and_or_b32 v{V_PB+2}, v{V_PB+4}, v{V_TMP+1}, s{S_TB+2}')
    a(f'v_lshl_or_b32 v{V_PB+3}, v{V_PB+4}, 16, s{S_TB+3}')
    a('s_waitcnt vmcnt(0)\ns_barrier')
    a(f's_cmp_lg_u32 s{S_W}, 0\ns_cbranch_scc1 L_C_nostat')
    a('s_mov_b32 exec_hi, 0')
    a(f'buffer_store_dwordx4 {vr(V_PB,4)}, v{V_TMP}, s[{SRD_WS}:{SRD_WS+3}], 0 offen sc1')
    a('s_mov_b64 exec, -1')
    a.label('L_C_nostat')
    a.label('L_C_tail')
    stamp(a, cfg, 5)
    V_W, V_O, V_B, V_Y, V_FS, V_FY, V_OS = V_Q, V_ACC, V_ACC + 8, V_SF, V_SF + 16, V_PB, V_STG
    V_OA, V_FA, V_FO, V_OW, V_OR, V_YA, V_MK = 9, 10, 11, 12, 13, 14, 15
    S_DRY, S_T1 = 53, 82
    L_O = 0
    a(f'v_add_u32 v{V_STW}, {BUF}, v{V_STA}')
    for i in range(8): a(f'ds_write_b128 v{V_STW}, {vr(V_STG+4*i,4)} offset:{lrow(i)*TS}')
    a(f'v_lshrrev_b32 v{V_TMP}, 2, v{V_C}')
    a(f'v_lshl_add_u32 v{V_TMP}, v{V_G}, 3, v{V_TMP}')
    a(f'v_mul_u32_u24 v{V_TMP}, {TS}, v{V_TMP}')
    a(f'v_and_b32 v{V_TMP+1}, 3, v{V_C}')
    a(f'v_lshl_add_u32 v{V_TMP}, v{V_TMP+1}, 3, v{V_TMP}')
    a(f's_lshl_b32 s62, s{S_W}, 7\ns_add_u32 s62, s62, {L_T0}')
    a(f'v_add_u32 v{V_TMP}, s62, v{V_TMP}')
    a('s_waitcnt lgkmcnt(0)\ns_barrier')
    for s_ in range(4):
        for t in range(4):
            f = V_W + 16*s_ + 4*t
            a(f'ds_read_b64_tr_b16 {vr(f,2)}, v{V_TMP} offset:{32*t}')
            a(f'ds_read_b64_tr_b16 {vr(f+2,2)}, v{V_TMP} offset:{32*t + 4*TS}')
        a('s_waitcnt lgkmcnt(0)')
        if s_ < 3: a(f'v_add_u32 v{V_TMP}, {32*TS}, v{V_TMP}')
    final_addr(a, V_FA, V_FO, V_TMP + 1, WS_YA, 0)
    a(f'v_and_b32 v{V_OA}, 7, v{V_C}')
    a(f'v_lshlrev_b32 v{V_OA}, 10, v{V_OA}')
    a(f'v_lshrrev_b32 v{V_TMP+1}, 3, v{V_C}')
    a(f'v_lshl_add_u32 v{V_OA}, v{V_TMP+1}, 9, v{V_OA}')
    a(f'v_lshl_add_u32 v{V_OA}, v{V_G}, 4, v{V_OA}')
    a(f's_lshl_b32 s62, s{S_H}, 13\ns_add_u32 s62, s62, {WS_OA:#x}')
    a(f's_lshl_b32 s63, s{S_W}, 6\ns_add_u32 s63, s63, s62')
    a(f'v_add_u32 v{V_OA}, s63, v{V_OA}')
    a(f'v_mul_u32_u24 v{V_OW}, 272, v{V_TMP+1}')
    a(f'v_lshl_add_u32 v{V_OW}, v{V_G}, 3, v{V_OW}')
    a(f's_lshl_b32 s62, s{S_W}, 5')
    a(f'v_add_u32 v{V_OW}, s62, v{V_OW}')
    a(f'v_and_b32 v{V_TMP+1}, 1, v{V_C}')
    a(f'v_mul_u32_u24 v{V_OR}, 272, v{V_TMP+1}')
    a(f'v_lshl_add_u32 v{V_OR}, v{V_G}, 4, v{V_OR}')
    a(f'v_lshlrev_b32 v{V_YA}, 16, v{V_TMP+1}')
    a(f'v_bfe_u32 v{V_TMP+1}, v{V_C}, 1, 2')
    a(f'v_lshl_add_u32 v{V_YA}, v{V_TMP+1}, 6, v{V_YA}')
    a(f'v_lshl_add_u32 v{V_YA}, v{V_G}, 4, v{V_YA}')
    a(f's_lshl_b32 s62, s{S_H}, 11\ns_lshl_b32 s63, s{S_W}, 8\ns_add_u32 s62, s62, s63\ns_add_u32 s62, s62, {WS_YA:#x}')
    a(f'v_add_u32 v{V_YA}, s62, v{V_YA}')
    for t in range(1, 4):
        m_ = (0x0303 << (2*t)) * 0x00010001
        a(f's_mov_b32 s{S_T1+2*t-2}, {m_:#x}\ns_mov_b32 s{S_T1+2*t-1}, {m_:#x}')
    a(f'v_mov_b32 v{V_MK}, 0xffffff00')
    a('s_mov_b32 s60, 0x0c0c0501\ns_mov_b32 s61, 0x05010c0c')
    stamp(a, cfg, 6)
    a(f's_mov_b32 s{S_DRY}, {SPIN_LIMIT if cfg.dry else 0}')
    if cfg.dry: a('s_branch L_C_merge')
    a.label('L_C_poll')
    a(f'v_mov_b32 v{V_O}, 0\nv_mov_b32 v{V_O+1}, 0\nv_mov_b32 v{V_O+2}, 0x8000\nv_mov_b32 v{V_O+3}, 0xff00')
    m8 = (1 << NA) - 1
    ld = lambda k=0: a(f'buffer_load_dwordx4 {vr(V_OS+4*k,4)}, v{V_OA}, s[{SRD_WS}:{SRD_WS+3}], 0 offen sc1')
    def ck(k=0, behind=None):
        if behind is not None: a(f's_waitcnt vmcnt({behind})')
        untag(a, V_O, V_TMP, src=V_OS + 4*k); bad_tags(a, V_TMP)
    if cfg.gate == 2:
        assert cfg.deal == 'glob'
        left = (128 - NA*cfg.NS) if cfg.col else (1024 - 8*NA*cfg.NS - 4*NA*cfg.E)
        a(f's_cmp_lg_u32 s{S_W}, 0\ns_cbranch_scc1 L_C_gd')
        a(f's_lshl_b32 s62, s{S_H}, 13\ns_add_u32 s62, s62, {WS_OA + 6*1024:#x}')
        a(f'v_mov_b32 v{V_TMP+1}, s62')
        a('s_mov_b64 exec, 1')
        poll_lanes(a, lambda: a(f'buffer_load_dword v{V_TMP}, v{V_TMP+1}, s[{SRD_WS}:{SRD_WS+3}], 0 offen sc1'),
                   lambda: a(f'v_cmp_gt_i32 vcc, {max(0, left - cfg.gleft - 1)}, v{V_TMP}'), cfg.gsleep, 'Cg')
        a.label('L_C_gd')
    if cfg.gate == 1:
        a(f's_cmp_lg_u32 s{S_W}, 0\ns_cbranch_scc1 L_C_gd')
        a(f's_mov_b64 exec, {m8}')
        poll_lanes(a, ld, ck, cfg.gsleep, 'Cg', any_=True)
        a.label('L_C_gd')
    a('s_barrier')
    stamp(a, cfg, 7)
    a(f's_mov_b32 exec_lo, {m8 * 0x01010101:#x}\ns_mov_b32 exec_hi, {m8 * 0x01010101:#x}')
    a('s_mov_b32 s64, 0')
    poll_sets(a, cfg, cfg.np1, 1, ld, ck, cfg.osleep, 'Co')
    a('s_mov_b64 exec, -1')
    stamp(a, cfg, 8)
    a.label('L_C_merge')
    E, M, X = V_O + 4, V_O + 5, V_O
    a(f'v_perm_b32 v{E}, v{V_O+1}, v{V_O}, s60')
    a(f'v_perm_b32 v{M}, v{V_O+3}, v{V_O+2}, s61')
    a(f'v_or_b32 v{E}, v{E}, v{M}')
    for n, ctl in enumerate(('quad_perm:[1,0,3,2]', 'quad_perm:[2,3,0,1]', 'row_half_mirror')):
        if n < 2:
            for k in (2*n, 2*n + 1): a(f'v_and_b32 v{X+k}, 0xffff0000, v{X+k}')
        else: a.nop(2)
        a(f'v_max_f32_dpp v{M}, v{M if n else E}, v{M if n else E} {ctl} row_mask:0xf bank_mask:0xf')
    a(f'v_sub_f32 v{E}, v{E}, v{M}')
    a(f'v_exp_f32 v{E}, v{E}')
    a('s_nop 0')
    for k in range(4): a(f'v_mul_f32 v{X+k}, v{X+k}, v{E}')
    allred8(a, 'v_add_f32', [E, X, X + 1, X + 2, X + 3])
    a(f'v_rcp_f32 v{E}, v{E}')
    a('s_mov_b32 exec_lo, 0x01010101\ns_mov_b32 exec_hi, 0x01010101')
    for k in range(4): a(f'v_mul_f32 v{X+k}, v{X+k}, v{E}')
    a(f'v_cvt_pk_bf16_f32 v{X}, v{X}, v{X+1}')
    a(f'v_cvt_pk_bf16_f32 v{X+1}, v{X+2}, v{X+3}')
    a(f'ds_write_b64 v{V_OW}, {vr(X,2)} offset:{L_O}')
    a('s_mov_b64 exec, -1')
    a('s_waitcnt lgkmcnt(0)\ns_barrier')
    for s_ in range(4): a(f'ds_read_b128 {vr(V_B+4*s_,4)}, v{V_OR} offset:{L_O + 64*s_}')
    for s_ in range(4):
        a(f's_waitcnt lgkmcnt({3-s_})')
        for t in range(4):
            c = '0' if s_ == 0 else vr(V_Y+4*t, 4)
            a(f'v_mfma_f32_16x16x32_bf16 {vr(V_Y+4*t,4)}, {vr(V_W+16*s_+4*t,4)}, {vr(V_B+4*s_,4)}, {c}')
    a(f's_mov_b32 s64, s{S_DRY}')
    a.nop(5)
    for t in range(1, 4):
        for i in range(4): a(f'v_cndmask_b32 v{V_Y+i}, v{V_Y+i}, v{V_Y+4*t+i}, s[{S_T1+2*t-2}:{S_T1+2*t-1}]')
    tag24(a, V_Y, V_MK)
    if cfg.dry: a(f's_cmp_lg_u32 s{S_DRY}, 0\ns_cbranch_scc1 L_C_nost')
    a('s_mov_b32 exec_lo, 0x00ff00ff\ns_mov_b32 exec_hi, 0x00ff00ff')
    a(f'buffer_store_dwordx4 {vr(V_Y,4)}, v{V_YA}, s[{SRD_WS}:{SRD_WS+3}], 0 offen sc1')
    a('s_mov_b64 exec, -1')
    stamp(a, cfg, 9)
    a.label('L_C_nost')
    a(f's_cmp_lg_u32 s{S_W}, 4\ns_cbranch_scc1 L_C_end')
    final_sum(a, cfg, cfg.np2, V_FS, V_FY, V_FA, V_FO, V_TMP, SRD_WS, 'C', cfg.fsleep, (S_DRY, 'L_C_end') if cfg.dry else None)
    stamp(a, cfg, 10)
    a(f's_cmp_lg_u32 s{S_H}, 0\ns_cbranch_scc1 L_C_end')
    a(f'v_mov_b32 v{V_TMP}, {WS_NONCE:#x}\nv_mov_b32 v{V_TMP+1}, s{S_TAG}')
    a('s_mov_b64 exec, 1')
    a(f'buffer_store_dword v{V_TMP+1}, v{V_TMP}, s[{SRD_WS}:{SRD_WS+3}], 0 offen sc1')
    a.label('L_C_end')
    if cfg.dry:
        a(f's_cmp_lg_u32 s{S_DRY}, 0\ns_mov_b32 s{S_DRY}, 0\ns_cbranch_scc1 L_C_poll')
    stamp_flush(a, cfg)
    a('s_endpgm')
```

```python
import sys, math, os, struct
from asmlib import Asm, vr, sr, lint

NAME = 'concat_heads__gqa_block_cached__compressed_kv_cla__decode'
NA = 6
LDS_BYTES = 150 * 1024
SCALE = (128 ** -0.5) * math.log2(math.e)
def f2u(x): return struct.unpack('<I', struct.pack('<f', x))[0]

WS_QABS  = 0x000000
WS_CSTAT = 0x010000
WS_NONCE = 0x014000
WS_FQ    = 0x015000
WS_QA    = 0x018000
WS_YB    = 0x020000
WS_YA    = 0x040000
WS_OA    = 0x060000
WS_CPART = 0x200000
WS_STAMP = 0x800000
GOLDEN   = 0x9E3779B9

P_AX, P_AK, P_AV, P_AWQ, P_AWO, P_BX, P_BC, P_BWQ = 4, 6, 8, 10, 12, 14, 16, 18
P_BWUK, P_BWUV, P_BWO, P_OUT, P_DBG, P_WS = 20, 22, 24, 26, 28, 30
S_H, S_R, S_W = 32, 33, 34
S_TAG = 58
S_WX = 80
S_TB = 76

SPIN_LIMIT = 1 << 16

DESCRIPTION = """
Generated by gen/gen2.py (hand-written generator).  One launch, 256 workgroups of 8 waves, one per CU.
id -> head h = id >> 3, role = (id - h) & 7 (the workgroups of a head are expected on different dies: speed only).
role 0..5 (A): K/V-cache attention of head h, one batch after the other.  A unit is 16 keys per wave; most units are fixed,
  the last ones are dealt by a counter in the LDS.  The first units are buffered in registers until q arrives from role 7.
  Scores by v_dot2 + DPP row sums, online softmax with the running maximum, P V by MFMA (A = p times a unit pattern,
  B = the V rows as loaded).  The workgroup publishes its normalised o with the log-sum-exp.
role 6 (W): q_B = x w_q, q_abs = q_B w_uk^T (absorbed up-projection); later the merge of the role-7 partials, w_uv, w_o
  and the sum over the heads for 32 output columns of part B.
role 7 (C): q = x wq for the A workgroups, then latent attention over 512 keys of c_kv for all 32 heads, last the merge of
  the role-A records of head h, wo[h] and the sum over the heads for 32 output columns of part A.
Hand-offs: sc1 stores and sc1 loads.  Polled data carries a tag derived from a word of the workspace that is changed at
  the end of the launch; q_abs and the role-7 partials are announced by tagged flags.  Every spin is bounded.
"""

class Cfg:
    stamps = False
    span = False
    loopst = False
    same = False
    idmul = 0
    P = 4
    NS = 18
    L0 = 4
    L1 = 4
    L2 = 4
    N1 = 0
    kpol = 'nt'
    vpol = 'nt'
    bpol = 'nt'
    cpol = 'nt'
    wqpol = 'nt'
    wopol = 'nt'
    wthr0 = 0
    wthr1 = 0
    wthr = 2
    wthr2 = 0
    cthr = 0
    crot = True
    cblk = True
    psleep = 8
    psleep2 = 2
    deal = 'glob'
    osleep = 0
    fsleep = 0
    gsleep = 2
    gate = 2
    gleft = 16
    E = 0
    dry = True
    np1 = 1
    np2 = 3
    stag = 6
    qthr = 0
    cspread = False
    cilv = False
    wxor = False
    skipB = 0
    xorb = 4
    wr = ''
    lay = 0
    col = False
    ahead = False

LAYOUTS = {
    0: ((1 << 8, 1 << 9), (1 << 10, 1 << 11), ((0, 9, 12),)),
    1: ((1 << 15 | 1 << 8, 1 << 16 | 1 << 9), (1 << 8, 1 << 9), ((0, 3, 12), (3, 2, 10), (5, 4, 17))),
    2: ((1 << 8, 1 << 9), (1 << 15, 1 << 16), ((0, 3, 12), (3, 2, 10), (5, 4, 17))),
    3: ((1 << 15 | 1 << 8, 1 << 9), (1 << 8, 1 << 10), ((0, 3, 12), (3, 1, 11), (4, 5, 16))),
    5: ((1 << 16 | 1 << 9, 1 << 8), (1 << 9, 1 << 10), ((0, 3, 12), (3, 1, 11), (4, 1, 15), (5, 4, 17))),
}
def unit_off(a, cfg, dst, u, hb):
    a(f's_bfe_u32 s63, s{u}, 0x10009\ns_lshl_b32 s63, s63, 26\ns_xor_b32 s{dst}, s63, s{hb}')
    for first, cnt, bit in LAYOUTS[cfg.lay][2]:
        a(f's_bfe_u32 s63, s{u}, {(cnt << 16) | first:#x}\ns_lshl_b32 s63, s63, {bit}\ns_or_b32 s{dst}, s{dst}, s63')

def srd(a, d, ptr, off_s=None, nrec=None, nrec_s=None):
    if off_s is None:
        a(f's_mov_b32 s{d}, s{ptr}')
        a(f's_and_b32 s{d+1}, s{ptr+1}, 0xffff')
    else:
        a(f's_add_u32 s{d}, s{ptr}, s{off_s}')
        a(f's_addc_u32 s{d+1}, s{ptr+1}, 0')
        a(f's_and_b32 s{d+1}, s{d+1}, 0xffff')
    if nrec_s is not None: a(f's_mov_b32 s{d+2}, s{nrec_s}')
    else: a(f's_mov_b32 s{d+2}, {nrec:#x}')
    a(f's_mov_b32 s{d+3}, 0x20000')

def stamp(a, cfg, idx):
    if not cfg.stamps: return
    a('s_memrealtime s[90:91]')
    a('s_waitcnt lgkmcnt(0)')
    a(f'v_writelane_b32 v254, s90, {idx}')
def stamp_flush(a, cfg):
    if not cfg.stamps: return
    a(f's_lshl_b32 s92, s2, 3\ns_add_u32 s92, s92, s{S_W}\ns_lshl_b32 s92, s92, 8')
    a(f's_add_u32 s92, s92, {WS_STAMP:#x}')
    a('s_mov_b64 exec, -1')
    a(f'v_lshl_add_u32 v253, v{V_LANE}, 2, s92')
    a(f'global_store_dword v253, v254, s[{P_WS}:{P_WS+1}]')
uid = [0]
def span_mark(a, cfg, end):
    if not cfg.span: return
    lab = f'L_span_{uid[0]}'; uid[0] += 1
    if not end:
        a(f's_cmp_lg_u32 s{S_W}, 0\ns_cbranch_scc1 {lab}')
        a(f's_cmp_ge_u32 s2, 8\ns_cbranch_scc1 {lab}')
    a('s_memrealtime s[90:91]')
    a('s_waitcnt lgkmcnt(0)')
    if not end: a('s_not_b32 s90, s90')
    a('s_mov_b64 s[94:95], exec\ns_mov_b64 exec, 1')
    a('v_mov_b32 v252, s90\nv_mov_b32 v250, 0')
    a(f'global_atomic_umax v250, v252, s[{P_DBG}:{P_DBG+1}] offset:{36 if end else 32} sc1')
    if not end: a('s_waitcnt vmcnt(0)')
    a('s_mov_b64 exec, s[94:95]')
    a.label(lab)

V_LANE, V_C, V_G = 1, 2, 3
V_MASK = 4

def lane_ids(a):
    a(f'v_and_b32 v{V_LANE}, 63, v0')
    a(f'v_and_b32 v{V_C}, 15, v0')
    a(f'v_bfe_u32 v{V_G}, v0, 4, 2')
def lane_masks(a, t):
    a(f'v_and_b32 v{t}, 1, v0')
    a(f'v_lshlrev_b32 v{t}, 4, v{t}')
    a(f'v_mov_b32 v{t+1}, 0xffff')
    a(f'v_lshlrev_b32 v{t}, v{t}, v{t+1}')
    a(f'v_bfe_u32 v{t+1}, v0, 1, 2')
    for i in range(4):
        a(f'v_cmp_eq_u32 vcc, {i}, v{t+1}')
        a('s_nop 1')
        a(f'v_cndmask_b32 v{V_MASK+i}, 0, v{t}, vcc')

def load_nonce(a):
    a(f's_load_dword s{S_TAG}, s[{P_WS}:{P_WS+1}], {WS_NONCE:#x}')
def make_tag(a):
    a(f's_add_u32 s{S_TAG}, s{S_TAG}, {GOLDEN:#x}')
    for k in range(4): a(f's_bfe_u32 s{S_TB+k}, s{S_TAG}, {(8 << 16) | 8*k:#x}')
def tag24(a, X, vmask):
    for k in range(4): a(f'v_add_u32 v{X+k}, 0x80, v{X+k}')
    for k in range(4): a(f'v_and_or_b32 v{X+k}, v{X+k}, v{vmask}, s{S_TB+k}')
def untag(a, X, t, first=True, src=None):
    for k in range(4): a(f'v_xor_b32 v{X+k}, s{S_TB+k}, v{(X if src is None else src)+k}')
    if first: a(f'v_or_b32 v{t}, v{X}, v{X+1}')
    else: a(f'v_or3_b32 v{t}, v{t}, v{X}, v{X+1}')
    a(f'v_or3_b32 v{t}, v{t}, v{X+2}, v{X+3}')
def bad_tags(a, t):
    a(f'v_and_b32 v{t}, 0xff, v{t}')
    a(f'v_cmp_ne_u32 vcc, 0, v{t}')

def poll_lanes(a, load, check, sleep, tag, any_=False):
    a('s_mov_b32 s64, 0')
    a.label(f'L_pl_{tag}')
    load()
    a('s_add_u32 s64, s64, 1')
    a('s_waitcnt vmcnt(0)')
    check()
    a('s_nop 0')
    if any_: a(f's_cmp_lg_u64 vcc, exec\ns_cbranch_scc1 L_pd_{tag}')
    else:
        a(f's_cmp_eq_u64 vcc, 0\ns_cbranch_scc1 L_pd_{tag}')
        a('s_mov_b64 exec, vcc')
    if sleep: a(f's_sleep {sleep}')
    a(f's_cmp_lt_u32 s64, {SPIN_LIMIT}\ns_cbranch_scc1 L_pl_{tag}')
    a.label(f'L_pd_{tag}')
def poll_sets(a, cfg, n, per, load, check, sleep, tag):
    for k in range(n):
        if k: a(f's_sleep {cfg.stag}')
        load(k)
    a.label(f'L_ps_{tag}')
    for k in range(n):
        check(k, per * (n - 1))
        a(f's_cmp_eq_u64 vcc, 0\ns_cbranch_scc1 L_pe_{tag}')
        if sleep: a(f's_sleep {sleep}')
        load(k)
    a('s_add_u32 s64, s64, 1')
    a(f's_cmp_lt_u32 s64, {SPIN_LIMIT}\ns_cbranch_scc1 L_ps_{tag}')
    a.label(f'L_pe_{tag}')
def wait_flags(a, cfg, load, check, tag):
    a(f's_cmp_lg_u32 s{S_W}, 0\ns_cbranch_scc1 L_wf_{tag}')
    a(f's_lshl_b64 exec, 1, s{S_H}')
    poll_lanes(a, load, check, cfg.psleep, tag + '1')
    a('s_mov_b32 exec_lo, -1\ns_mov_b32 exec_hi, 0')
    poll_lanes(a, load, check, cfg.psleep2, tag + '2')
    a('s_mov_b64 exec, -1')
    a.label(f'L_wf_{tag}')
    a('s_barrier')

def rowcomb(a, X, Wr, ACC, AOP, TMP, wait_first, after=None):
    for s in range(16):
        sel = '0x01000100' if s % 2 == 0 else '0x03020302'
        t = TMP + (s & 1)
        A = AOP + 4 * (s & 1)
        a(f's_mov_b32 s60, {sel}')
        a(f'v_perm_b32 v{t}, v{X + s//2}, v{X + s//2}, s60')
        for i in range(4):
            a(f'v_and_b32 v{A+i}, v{t}, v{V_MASK+i}')
        n = 15 - s + wait_first + (s if after else 0)
        a(f's_waitcnt vmcnt({min(63, n)})')
        a('s_nop 0')
        c = '0' if s == 0 else vr(ACC, 4)
        a(f'v_mfma_f32_16x16x32_bf16 {vr(ACC,4)}, {vr(A,4)}, {vr(Wr+4*s,4)}, {c}')
        if after: after(s)

def xrow_allreduce(a, op, x, tmp, steps=(16, 32)):
    for st in steps:
        a(f'v_mov_b32 v{tmp}, v{x}')
        a.nop(2)
        a(f'v_permlane{st}_swap_b32 v{x}, v{tmp}')
        a.nop(1)
        a(f'{op} v{x}, v{x}, v{tmp}')

def allred8(a, op, xs):
    for ctl in ('quad_perm:[1,0,3,2]', 'quad_perm:[2,3,0,1]', 'row_half_mirror'):
        a.nop(max(0, 3 - len(xs)))
        for x in xs:
            a(f'{op}_dpp v{x}, v{x}, v{x} {ctl} row_mask:0xf bank_mask:0xf')

def slice_loads(a, srd_, voff, dst, pol, kind, thr=0):
    if kind == 'rows':
        for s_ in range(16):
            if thr: a(f's_waitcnt vmcnt({thr-1})')
            a(f's_xor_b32 s62, s{S_WX}, {s_*8192}')
            a(f'buffer_load_dwordx4 {vr(dst+4*s_,4)}, v{voff}, s[{srd_}:{srd_+3}], s62 offen {pol}')
    else:
        for s_ in range(4):
            for cb in range(4):
                if thr: a(f's_waitcnt vmcnt({thr-1})')
                a(f'buffer_load_dwordx4 {vr(dst+16*s_+4*cb,4)}, v{voff}, s[{srd_}:{srd_+3}], 0 offen offset:{s_*1024+cb*256} {pol}')

def rows_voff(a, v):
    a(f'v_lshlrev_b32 v{v}, 17, v{V_G}')
    a(f'v_lshl_add_u32 v{v}, v{V_C}, 4, v{v}')
    a(f's_lshl_b32 s62, s{S_W}, 19')
    a(f'v_add_u32 v{v}, s62, v{v}')
def wo_voff(a, v):
    a(f'v_lshlrev_b32 v{v}, 12, v{V_G}')
    a(f'v_lshl_add_u32 v{v}, v{V_C}, 4, v{v}')
    a(f's_lshl_b32 s62, s{S_W}, 14')
    a(f'v_add_u32 v{v}, s62, v{v}')
def x_loads(a, srd_, X, tmp):
    a(f'v_lshrrev_b32 v{tmp}, 3, v{V_C}')
    a(f'v_lshlrev_b32 v{tmp}, 10, v{tmp}')
    a(f'v_lshl_add_u32 v{tmp}, v{V_G}, 5, v{tmp}')
    a(f's_lshl_b32 s62, s{S_W}, 7')
    a(f'v_add_u32 v{tmp}, s62, v{tmp}')
    if CFG.wxor:
        a(f's_and_b32 s{S_WX}, s{S_H}, 3\ns_lshl_b32 s63, s{S_WX}, 3\ns_lshl_b32 s{S_WX}, s{S_WX}, 15')
        for k in range(4):
            a(f's_xor_b32 s62, s63, {8*k}')
            a(f'buffer_load_dwordx2 {vr(X+2*k,2)}, v{tmp}, s[{srd_}:{srd_+3}], s62 offen')
        return
    a(f's_mov_b32 s{S_WX}, 0')
    a(f'buffer_load_dwordx4 {vr(X,4)}, v{tmp}, s[{srd_}:{srd_+3}], 0 offen')
    a(f'buffer_load_dwordx4 {vr(X+4,4)}, v{tmp}, s[{srd_}:{srd_+3}], 0 offen offset:16')

def dtile_addr(a, tmp, wstride_sh, bstride_sh):
    a(f'v_lshrrev_b32 v{tmp}, 1, v{V_G}')
    a(f'v_lshlrev_b32 v{tmp}, {bstride_sh}, v{tmp}')
    a(f'v_lshl_add_u32 v{tmp}, v{V_C}, 5, v{tmp}')
    a(f'v_and_b32 v{tmp+1}, 1, v{V_G}')
    a(f'v_lshl_add_u32 v{tmp}, v{tmp+1}, 4, v{tmp}')
    a(f's_lshl_b32 s63, s{S_W}, {wstride_sh}')
    a(f'v_add_u32 v{tmp}, s63, v{tmp}')
def dtile_to_lds(a, D, tmp, base, wstride_sh, bstride_sh, ncb):
    dtile_addr(a, tmp, wstride_sh, bstride_sh)
    if base > 60000:
        a(f'v_add_u32 v{tmp}, {base}, v{tmp}'); base = 0
    a.nop(2)
    for cb in range(ncb):
        if cb == ncb - 1: a.nop(6)
        a(f'ds_write_b128 v{tmp}, {vr(D+4*cb,4)} offset:{base + 512*cb}')

def q_reduce(a, D, tmp, L_QP, L_QB, tag):
    dtile_to_lds(a, D, tmp, L_QP, 10, 9, 1)
    a('s_waitcnt lgkmcnt(0)\ns_barrier')
    a(f's_cmp_ge_u32 s{S_W}, 4\ns_cbranch_scc1 L_{tag}_qskip')
    a(f'v_lshlrev_b32 v{tmp+2}, 2, v0')
    for w in range(8):
        a(f'ds_read_b32 v{tmp+4+w}, v{tmp+2} offset:{L_QP + 1024*w}')
    a('s_waitcnt lgkmcnt(0)')
    for w in range(1, 8):
        a(f'v_add_f32 v{tmp+4}, v{tmp+4}, v{tmp+4+w}')
    a(f'v_cvt_pk_bf16_f32 v{tmp+4}, v{tmp+4}, v{tmp+4}')
    a(f'v_lshlrev_b32 v{tmp+2}, 1, v0')
    a(f'ds_write_b16 v{tmp+2}, v{tmp+4} offset:{L_QB}')
    a('s_waitcnt lgkmcnt(0)')
    a.label(f'L_{tag}_qskip')
    a('s_barrier')

def role_A(a, cfg):
    P, NS = cfg.P, cfg.NS
    NT = 1024
    PER = 8 * NA
    POOL = NS * PER + cfg.E * PER // 2
    OS = 1056
    L_O, L_S = 0, 8 * OS
    L_CT = L_S + 128
    lds = cfg.deal == 'lds'
    NW = NT // PER
    TD = 8 * (NW - NS)
    SRD_K, SRD_V, S_CTR = 40, 44, 52
    S_CUR, S_NXT, S_OC, S_ON, S_GR, S_IT, S_HB, S_PH, S_PW, S_PX, S_DL = 35, 36, 37, 38, 39, 54, 55, 56, 57, 59, 66
    M0 = 0xff7fffff
    V_L16 = 8
    V_Q, V_Q2 = 12, 16
    V_R = 20
    V_X = V_R + 32
    V_T = V_X + 32 * P
    V_A = V_T + 4
    V_ACC = V_A + 16
    V_M, V_L, V_AL, V_MN, V_SC, V_XX, V_P0, V_P1 = [V_ACC + 4 + k for k in range(8)]
    V_PL = V_A
    V_TMP = V_A + 12
    V_OA, V_SA, V_MA, V_QA, V_CA, V_ONE, V_GA = [V_ACC + 12 + k for k in range(7)]
    assert V_GA < 250 and V_M % 2 == 0 and (2*P - 1) * PER <= 512 and NS >= 2 * P and POOL <= NT
    L0, L1, L2, N1 = cfg.L0, cfg.L1, cfg.L2, cfg.N1
    a.label('L_roleA')
    a(f's_lshl_b32 s62, s{S_H}, 21')
    srd(a, SRD_K, P_AK, off_s=62, nrec=66 << 20)
    def load(dst, slot, so):
        isv, i = slot >= 4, slot % 4
        s_ = SRD_V if isv else SRD_K
        if cfg.lay: a(f'buffer_load_dwordx4 {vr(dst+4*slot,4)}, v{V_L16 + i}, s[{s_}:{s_+3}], s{so} offen {cfg.vpol if isv else cfg.kpol}')
        else: a(f'buffer_load_dwordx4 {vr(dst+4*slot,4)}, v{V_L16}, s[{s_}:{s_+3}], s{so} offen offset:{1024*i} {cfg.vpol if isv else cfg.kpol}')
    ops = []
    Lr = L1 if N1 > 0 else L2
    def pre(n):
        u, slot = divmod(n, 8)
        if n >= L0:
            a(f's_waitcnt vmcnt({len(ops) - 1 - ops.index(n - L0)})')
        if cfg.loopst and n >= L0 and (n - L0) % 8 == 3: stamp(a, cfg, 16 + (n - L0) // 8)
        if slot == 0 and n:
            a(f's_add_u32 s{S_CUR}, s{S_CUR}, {PER}')
            unit_off(a, cfg, S_OC, S_CUR, S_HB)
        load(V_X + 32 * u if u < P else V_R, slot, S_OC)
        ops.append(n)
    for n in range(min(L0, 4)): pre(n)
    stamp(a, cfg, 0)
    srd(a, SRD_V, P_AV, off_s=62, nrec=66 << 20)
    for n in range(min(L0, 4), L0): pre(n)
    if lds:
        a(f'v_mov_b32 v{V_CA}, {L_CT}\nv_mov_b32 v{V_ONE}, 0')
        a(f'ds_write_b32 v{V_CA}, v{V_ONE}')
        a(f's_lshl_b32 s{S_PW}, s{S_R}, 3\ns_add_u32 s{S_PW}, s{S_PW}, {POOL}')
        a(f's_add_u32 s{S_PX}, s{S_R}, {NW*PER - NA*TD}')
    lane_masks(a, V_TMP)
    if lds:
        a('s_waitcnt lgkmcnt(0)\ns_barrier')
        a(f'v_mov_b32 v{V_ONE}, 1')
    load_nonce(a)
    a(f's_lshl_b32 s62, s{S_H}, 13\ns_add_u32 s62, s62, {WS_OA + 6*1024:#x}')
    a(f's_mov_b32 s{S_DL}, {NS - 1 - P}')
    if cfg.E:
        assert not lds and not cfg.col and not cfg.ahead and not cfg.same
        a(f's_bitcmp0_b32 s2, 0\ns_cselect_b32 s{S_DL}, {NS - 1 - P + cfg.E}, s{S_DL}')
        a(f's_lshr_b32 s{S_PX}, s{S_R}, 1\ns_lshl3_add_u32 s{S_PX}, s{S_PX}, s{S_W}\ns_add_u32 s{S_PX}, s{S_PX}, {NS * PER}')
    if cfg.col: a(f's_lshl_b32 s63, s{S_W}, 7\ns_add_u32 s62, s62, s63\ns_add_u32 s{S_PW}, s{S_W}, {POOL}')
    a(f's_add_u32 s{S_CTR}, s{P_WS}, s62\ns_addc_u32 s{S_CTR+1}, s{P_WS+1}, 0')
    a(f'v_mov_b32 v{V_M}, {M0:#x}')
    a(f'v_mov_b32 v{V_L}, 0')
    for k in range(4): a(f'v_mov_b32 v{V_ACC+k}, 0')
    a(f'v_mov_b32 v{V_SC}, {f2u(SCALE):#x}')
    a(f's_mov_b32 s{S_PH}, 0\ns_mov_b32 s{S_IT}, 0')
    a(f's_lshr_b32 s61, s{S_HB}, 17')
    a(f'v_lshrrev_b32 v{V_QA}, 1, v{V_G}')
    a(f'v_lshlrev_b32 v{V_QA}, 9, v{V_QA}')
    a(f'v_xor_b32 v{V_QA}, s61, v{V_QA}')
    a(f'v_lshl_add_u32 v{V_QA}, v{V_C}, 5, v{V_QA}')
    a(f'v_and_b32 v{V_TMP}, 1, v{V_G}')
    a(f'v_lshl_add_u32 v{V_QA}, v{V_TMP}, 4, v{V_QA}')
    a(f's_lshl_b32 s62, s{S_H}, 10\ns_add_u32 s62, s62, {WS_QA:#x}')
    a(f'v_add_u32 v{V_QA}, s62, v{V_QA}')
    a(f'v_lshlrev_b32 v{V_OA}, 5, v{V_C}')
    a(f'v_lshl_add_u32 v{V_OA}, v{V_G}, 4, v{V_OA}')
    a(f's_mul_i32 s62, s{S_W}, {OS}')
    a(f'v_add_u32 v{V_OA}, s62, v{V_OA}')
    a(f's_lshl_b32 s62, s{S_W}, 3')
    a(f'v_mov_b32 v{V_SA}, s62')
    a(f'v_and_b32 v{V_TMP}, 7, v{V_LANE}')
    a(f'v_lshrrev_b32 v{V_TMP+1}, 3, v{V_LANE}')
    a(f'v_add_u32 v{V_TMP+1}, s62, v{V_TMP+1}')
    a(f'v_lshlrev_b32 v{V_TMP+1}, 4, v{V_TMP+1}')
    a(f'v_mul_u32_u24 v{V_MA}, {OS}, v{V_TMP}')
    a(f'v_add_u32 v{V_MA}, v{V_MA}, v{V_TMP+1}')
    a(f'v_xor_b32 v{V_GA}, s61, v{V_TMP+1}')
    a(f's_lshl_b32 s62, s{S_H}, 3\ns_add_u32 s62, s62, s{S_R}\ns_lshl_b32 s62, s62, 10\ns_add_u32 s62, s62, {WS_OA:#x}')
    a(f'v_add_u32 v{V_GA}, s62, v{V_GA}')
    for n in range(L0, 8 * P): pre(n)
    a(f'global_load_dwordx4 {vr(V_PL,4)}, v{V_QA}, s[{P_WS}:{P_WS+1}] sc1'); ops.append('q')
    for n in range(8 * P, 8 * P + Lr): pre(n)
    stamp(a, cfg, 1)
    a('s_waitcnt lgkmcnt(0)')
    make_tag(a)
    a('s_mov_b32 s64, 0\ns_mov_b32 s60, 0x05040100\ns_mov_b32 s61, 0x07060302')
    a(f's_waitcnt vmcnt({Lr})')
    a.label('L_A_qchk')
    a(f'v_perm_b32 v{V_TMP}, v{V_PL+1}, v{V_PL}, s60')
    a(f'v_perm_b32 v{V_TMP+1}, v{V_PL+3}, v{V_PL+2}, s60')
    a(f'v_xor_b32 v{V_TMP}, s{S_TAG}, v{V_TMP}')
    a(f'v_xor_b32 v{V_TMP+1}, s{S_TAG}, v{V_TMP+1}')
    a(f'v_or_b32 v{V_TMP}, v{V_TMP}, v{V_TMP+1}')
    a(f'v_cmp_ne_u32 vcc, 0, v{V_TMP}')
    a('s_add_u32 s64, s64, 1')
    a('s_cmp_eq_u64 vcc, 0\ns_cbranch_scc1 L_A_qok')
    a(f's_cmp_ge_u32 s64, {SPIN_LIMIT}\ns_cbranch_scc1 L_A_qok')
    a(f'global_load_dwordx4 {vr(V_PL,4)}, v{V_QA}, s[{P_WS}:{P_WS+1}] sc1')
    a('s_waitcnt vmcnt(0)')
    a('s_branch L_A_qchk')
    a.label('L_A_qok')
    a(f'v_perm_b32 v{V_TMP}, v{V_PL+1}, v{V_PL}, s61')
    a(f'v_perm_b32 v{V_TMP+1}, v{V_PL+3}, v{V_PL+2}, s61')
    a(f'v_lshlrev_b32 v{V_TMP+2}, 2, v{V_C}')
    for row in range(4):
        for k in range(2):
            a(f'ds_bpermute_b32 v{V_Q + 2*row + k}, v{V_TMP+2}, v{V_TMP+k} offset:{64*row}')
    a('s_waitcnt lgkmcnt(0)')
    stamp(a, cfg, 2)

    tails = []
    def score(i, K, last=False):
        a(f'v_dot2_f32_bf16 v{V_T+i}, v{K}, v{V_Q}, 0')
        for k in range(1, 4):
            a(f'v_dot2_f32_bf16 v{V_T+i}, v{K+k}, v{V_Q+k}, v{V_T+i}')
    def rowsum(idx):
        a.nop(3 if len(idx) == 1 else 2)
        for st in (8, 4, 2, 1):
            for i in idx:
                a(f'v_add_f32_dpp v{V_T+i}, v{V_T+i}, v{V_T+i} row_ror:{st} row_mask:0xf bank_mask:0xf')
            if st != 1: a.nop(max(0, 3 - len(idx)))
        for i in idx: a(f'v_mul_f32 v{V_T+i}, v{V_T+i}, v{V_SC}')
    def soft(tag):
        a(f'v_max3_f32 v{V_XX}, v{V_T}, v{V_T+1}, v{V_T+2}')
        a(f'v_max_f32 v{V_XX}, v{V_XX}, v{V_T+3}')
        a(f'v_cmp_gt_f32 vcc, v{V_XX}, v{V_M}')
        a('s_nop 0')
        a(f's_cmp_lg_u64 vcc, 0\ns_cbranch_scc1 L_A_max{tag}')
        a.label(f'L_A_maxd{tag}')
        for i in range(4): a(f'v_sub_f32 v{V_T+i}, v{V_T+i}, v{V_M}')
        for i in range(4): a(f'v_exp_f32 v{V_T+i}, v{V_T+i}')
        def upd():
            a.label(f'L_A_max{tag}')
            a(f'v_max_f32_dpp v{V_XX}, v{V_XX}, v{V_XX} row_bcast:15 row_mask:0xa bank_mask:0xf')
            a.nop(2)
            a(f'v_max_f32_dpp v{V_XX}, v{V_XX}, v{V_XX} row_bcast:31 row_mask:0xc bank_mask:0xf')
            a.nop(1)
            a(f'v_readlane_b32 s62, v{V_XX}, 63')
            a.nop(2)
            a(f'v_max_f32 v{V_MN}, s62, v{V_M}')
            a(f'v_sub_f32 v{V_AL}, v{V_M}, v{V_MN}')
            a(f'v_exp_f32 v{V_AL}, v{V_AL}')
            a(f'v_mov_b32 v{V_M}, v{V_MN}')
            for k in range(4): a(f'v_mul_f32 v{V_ACC+k}, v{V_ACC+k}, v{V_AL}')
            a(f'v_mul_f32 v{V_L}, v{V_L}, v{V_AL}')
            a(f's_branch L_A_maxd{tag}')
        tails.append(upd)
    def aop(i):
        p = V_P0 + (i & 1)
        a(f'v_cvt_pk_bf16_f32 v{p}, v{V_T+i}, v{V_T+i}')
        a(f'v_add_f32 v{V_L}, v{V_L}, v{V_T+i}')
        for k in range(4): a(f'v_and_b32 v{V_A+4*i+k}, v{p}, v{V_MASK+k}')
    def pv(i, Vr):
        a(f'v_mfma_f32_16x16x32_bf16 {vr(V_ACC,4)}, {vr(V_A+4*i,4)}, {vr(Vr,4)}, {vr(V_ACC,4)}')
    def deposit(s):
        a(f'v_add_f32_dpp v{V_L}, v{V_L}, v{V_L} row_bcast:15 row_mask:0xa bank_mask:0xf')
        a.nop(2)
        a(f'v_add_f32_dpp v{V_L}, v{V_L}, v{V_L} row_bcast:31 row_mask:0xc bank_mask:0xf')
        a('s_mov_b32 exec_lo, 0\ns_brev_b32 exec_hi, 1')
        a(f'ds_write_b64 v{V_SA}, {vr(V_M,2)} offset:{L_S + 64*s}')
        a('s_mov_b32 exec_lo, -1\ns_mov_b32 exec_hi, 0')
        a(f'ds_write_b128 v{V_OA}, {vr(V_ACC,4)} offset:{L_O + 512*s}')
        a('s_mov_b64 exec, -1')
        a('s_waitcnt lgkmcnt(0)')
    def body(L, tag, last):
        first = (tag == 'a') or N1 == 0
        a('.p2align 6')
        a.label(f'L_A_loop{tag}')
        if first:
            a(f's_cmp_lt_u32 s{S_IT}, {P}\ns_cbranch_scc1 L_A_back')
            a.label('L_A_backd')
        a(f's_lshr_b32 s62, s{S_CUR}, 9')
        a(f's_cmp_lg_u32 s62, s{S_PH}\ns_cbranch_scc1 L_A_sw{tag}')
        a.label(f'L_A_swd{tag}')
        def sw():
            a.label(f'L_A_sw{tag}')
            a.nop(2)
            deposit(0)
            a(f's_mov_b32 s{S_PH}, 1')
            a(f'v_mov_b32 v{V_M}, {M0:#x}\nv_mov_b32 v{V_L}, 0')
            for k in range(4):
                a(f'v_mov_b32 v{V_ACC+k}, 0\nv_mov_b32 v{V_Q+k}, v{V_Q2+k}')
            stamp(a, cfg, 4)
            a(f's_branch L_A_swd{tag}')
        tails.append(sw)
        deal = (last is None or last > NS - 2 - P) and POOL < NT
        def grab(lab, first_it):
            a(f's_cmp_lt_u32 s{S_IT}, {first_it}\ns_cbranch_scc1 {lab}')
            if cfg.ahead: a(f's_cmp_ge_u32 s{S_NXT}, {NT}\ns_cbranch_scc1 {lab}')
            if lds:
                a('s_mov_b64 exec, 1')
                a(f'ds_add_rtn_u32 v{V_QA}, v{V_CA}, v{V_ONE}')
                a('s_mov_b64 exec, -1')
            else:
                a(f's_mov_b32 s{S_GR}, 1')
                a(f's_atomic_add s{S_GR}, s[{S_CTR}:{S_CTR+1}], 0 glc')
            a.label(lab)
        late = lds and L <= 4
        if deal and not cfg.ahead and not late: grab(f'L_A_nog{tag}', f's{S_DL}')
        def take():
            a(f's_add_u32 s{S_NXT}, s{S_CUR}, {PER}')
            if deal:
                a(f's_cmp_lt_u32 s{S_IT}, {NS - 1 - P}\ns_cbranch_scc1 L_A_not{tag}')
                if cfg.E:
                    a(f's_mov_b32 s{S_NXT}, s{S_PX}\ns_add_u32 s{S_PX}, s{S_PX}, {PER // 2}')
                    a(f's_cmp_lt_u32 s{S_IT}, s{S_DL}\ns_cbranch_scc1 L_A_not{tag}')
                a('s_waitcnt lgkmcnt(0)')
                if lds:
                    a(f'v_readfirstlane_b32 s{S_GR}, v{V_QA}')
                    a('s_nop 0')
                    a(f's_lshr_b32 s62, s{S_GR}, 3\ns_mul_i32 s62, s62, {PER - 8}\ns_add_u32 s62, s62, s{S_GR}\ns_add_u32 s62, s62, s{S_PW}')
                    a(f's_mul_i32 s63, s{S_GR}, {NA}\ns_add_u32 s63, s63, s{S_PX}')
                    a(f's_cmp_lt_u32 s{S_GR}, {TD}\ns_cselect_b32 s{S_NXT}, s62, s63')
                else:
                    a(f's_add_u32 s{S_GR}, s{S_GR}, 1')
                    a(f's_min_u32 s{S_GR}, s{S_GR}, {NT}')
                    if cfg.col: a(f's_lshl3_add_u32 s{S_NXT}, s{S_GR}, s{S_PW}')
                    else: a(f's_add_u32 s{S_NXT}, s{S_GR}, {POOL}')
                a.label(f'L_A_not{tag}')
            if cfg.loopst:
                a(f's_add_u32 s93, s{S_IT}, {16 + P}\ns_min_u32 s93, s93, 63\ns_mov_b32 m0, s93')
                stamp(a, cfg, 'm0')
            if deal and cfg.ahead: grab(f'L_A_nog{tag}', NS - 2 - P)
            unit_off(a, cfg, S_ON, S_NXT, S_HB)
            if deal:
                a(f's_cmp_lt_u32 s{S_NXT}, {NT}\ns_cselect_b32 s{SRD_K+2}, s{SRD_K+2}, 0')
                if L > 4: a(f's_mov_b32 s{SRD_V+2}, s{SRD_K+2}')
        def step(j, use):
            m = j + L
            if m == 8: take()
            a(f's_waitcnt vmcnt({L-1})')
            if L == 8: use()
            load(V_R, m % 8, S_OC if m < 8 else S_ON)
            if L < 8: use()
        for i in range(4):
            step(i, lambda: score(i, V_R + 4*i))
            rowsum([i])
        if deal and late: grab(f'L_A_nog{tag}', f's{S_DL}')
        soft(tag)
        for i in range(4):
            aop(i)
            step(4 + i, lambda: (a('s_nop 0') if L == 8 else None, pv(i, V_R + 16 + 4*i)))
        a(f's_mov_b32 s{S_CUR}, s{S_NXT}\ns_mov_b32 s{S_OC}, s{S_ON}')
        a(f's_add_u32 s{S_IT}, s{S_IT}, 1')
        if last is None: a(f's_cmp_lt_u32 s{S_CUR}, {NT}')
        else:
            if deal: a(f's_cmp_ge_u32 s{S_CUR}, {NT}\ns_cbranch_scc1 L_A_out')
            a(f's_cmp_lt_u32 s{S_IT}, {last}')
        a(f's_cbranch_scc1 L_A_loop{tag}')
    def back():
        a.label('L_A_back')
        for u in range(P):
            if u < P - 1: a(f's_cmp_lg_u32 s{S_IT}, {u}\ns_cbranch_scc1 L_A_bk{u+1}')
            X = V_X + 32 * u
            for i in range(4): score(i, X + 4*i)
            rowsum([0, 1, 2, 3])
            soft(f'x{u}')
            for i in range(4): aop(i)
            for i in range(4): pv(i, X + 16 + 4*i)
            a('s_branch L_A_backd')
            if u < P - 1: a.label(f'L_A_bk{u+1}')
    if N1 > 0:
        assert P <= N1 and L2 >= L1
        body(L1, 'a', N1)
        for m in range(L1, L2): load(V_R, m, S_OC)
    body(L2, 'b', None)
    a.label('L_A_out')
    stamp(a, cfg, 5)
    if POOL < 512 + PER:
        a(f's_cmp_eq_u32 s{S_PH}, 0\ns_cbranch_scc1 L_A_swe')
        a.label('L_A_swde')
        def swe():
            a.label('L_A_swe')
            a.nop(4)
            deposit(0)
            a(f'v_mov_b32 v{V_M}, {M0:#x}\nv_mov_b32 v{V_L}, 0')
            for k in range(4): a(f'v_mov_b32 v{V_ACC+k}, 0')
            a('s_branch L_A_swde')
        tails.append(swe)
    deposit(1)
    a('s_barrier')
    O, ST = V_A, V_A + 4
    a(f'ds_read_b128 {vr(O,4)}, v{V_MA} offset:{L_O}')
    a(f'v_and_b32 v{V_TMP}, 7, v{V_LANE}')
    a(f's_lshr_b32 s62, s{S_W}, 2\ns_lshl_b32 s62, s62, 6')
    a(f'v_lshl_add_u32 v{V_TMP}, v{V_TMP}, 3, s62')
    a(f'ds_read_b64 {vr(ST,2)}, v{V_TMP} offset:{L_S}')
    a('s_waitcnt lgkmcnt(0)')
    MX, LS, G = V_A + 6, V_A + 7, V_A + 8
    a(f'v_mov_b32 v{MX}, v{ST}')
    allred8(a, 'v_max_f32', [MX])
    a(f'v_sub_f32 v{ST}, v{ST}, v{MX}')
    a(f'v_exp_f32 v{ST}, v{ST}')
    a(f'v_mov_b32 v{V_TMP}, s{S_TAG}')
    a(f'v_mul_f32 v{LS}, v{ST+1}, v{ST}')
    for k in range(4): a(f'v_mul_f32 v{O+k}, v{O+k}, v{ST}')
    allred8(a, 'v_add_f32', [LS, O, O + 1, O + 2, O + 3])
    if not lds: a(f'v_max_f32 v{LS}, 0x00800000, v{LS}')
    a(f'v_log_f32 v{ST}, v{LS}')
    a(f'v_rcp_f32 v{LS}, v{LS}')
    a('s_mov_b32 s62, 0x05010400\ns_mov_b32 s63, 0x07030602')
    a(f'v_add_f32 v{MX}, v{MX}, v{ST}')
    for k in range(4): a(f'v_mul_f32 v{O+k}, v{O+k}, v{LS}')
    a(f'v_perm_b32 v{ST}, v{MX}, v{V_TMP}, s62')
    a(f'v_perm_b32 v{ST+1}, v{MX}, v{V_TMP}, s63')
    a(f'v_cvt_pk_bf16_f32 v{O}, v{O}, v{O+1}')
    a(f'v_cvt_pk_bf16_f32 v{O+1}, v{O+2}, v{O+3}')
    a('s_mov_b32 exec_lo, 0x01010101\ns_mov_b32 exec_hi, 0x01010101')
    for k in range(4): a(f'v_perm_b32 v{G+k}, v{O+k//2}, v{ST+k//2}, s{60+k%2}')
    a(f'global_store_dwordx4 v{V_GA}, {vr(G,4)}, s[{P_WS}:{P_WS+1}] sc1')
    stamp(a, cfg, 6)
    stamp_flush(a, cfg)
    a('s_endpgm')
    back()
    for t in tails: t()

def build(cfg):
    global CFG
    CFG = cfg
    a = Asm()
    hdr = open(os.path.join(os.path.dirname(os.path.abspath(__file__)), 'header.txt')).read().rstrip('\n')
    a(hdr)
    a(f'; @launch grid=(256,1,1) block=(512,1,1) lds={LDS_BYTES}')
    for l in DESCRIPTION.strip().split('\n'): a('; ' + l)
    a('.amdgcn_target "amdgcn-amd-amdhsa--gfx950"')
    a('.text')
    a(f'.globl {NAME}_kernel')
    a('.p2align 8')
    a(f'.type {NAME}_kernel,@function')
    a.label(f'{NAME}_kernel')
    a('s_cmp_ge_u32 s2, 256\ns_cbranch_scc1 L_exit')
    a('s_load_dwordx16 s[4:19], s[0:1], 0')
    a('s_load_dwordx8 s[20:27], s[0:1], 64')
    a('s_load_dwordx4 s[28:31], s[0:1], 96')
    if cfg.idmul: a(f's_mul_i32 s2, s2, {cfg.idmul}\ns_and_b32 s2, s2, 255')
    a(f'v_lshrrev_b32 v8, 6, v0')
    if cfg.same:
        a(f's_and_b32 s60, s2, 7\ns_lshr_b32 s61, s2, 6\ns_lshl_b32 s61, s61, 3\ns_add_u32 s{S_H}, s60, s61')
        a(f's_bfe_u32 s{S_R}, s2, 0x30003')
    else:
        a(f's_lshr_b32 s{S_H}, s2, 3')
        a(f's_sub_u32 s{S_R}, s2, s{S_H}\ns_and_b32 s{S_R}, s{S_R}, 7')
    a(f'v_readfirstlane_b32 s{S_W}, v8')
    lane_ids(a)
    if cfg.stamps: a('v_mov_b32 v254, 0')
    a(f'v_lshlrev_b32 v8, 4, v{V_LANE}')
    if cfg.lay:
        gm, im, um = LAYOUTS[cfg.lay]
        full = 0
        for m_ in gm + im: full |= m_
        assert not any(full >> b & 1 for _, cnt, bit in um for b in range(bit, bit + cnt))
        a(f'v_lshlrev_b32 v8, 4, v{V_C}')
        for k in range(2):
            a(f'v_bfe_i32 v9, v0, {4+k}, 1')
            a(f'v_and_b32 v9, {gm[k]:#x}, v9')
            a('v_xor_b32 v8, v8, v9')
        for i in range(1, 4):
            a(f'v_xor_b32 v{8+i}, {(im[0] if i & 1 else 0) ^ (im[1] if i & 2 else 0):#x}, v8')
    a(f's_bfe_u32 s55, s{S_H}, {(1 << 16) | cfg.xorb:#x}\ns_lshl_b32 s55, s55, 26')
    a(f's_lshl_b32 s35, s{S_R}, 3\ns_add_u32 s35, s35, s{S_W}')
    unit_off(a, cfg, 37, 35, 55)
    a('s_waitcnt lgkmcnt(0)')
    span_mark(a, cfg, False)
    a(f's_cmp_eq_u32 s{S_R}, {NA}\ns_cbranch_scc1 L_roleW')
    a(f's_cmp_eq_u32 s{S_R}, {NA+1}\ns_cbranch_scc1 L_roleC')
    role_A(a, cfg)
    import roles2
    roles2.role_W(a, cfg)
    roles2.role_C(a, cfg)
    a.label('L_exit')
    a('s_endpgm')
    a(f'''.section .rodata,"a"
.p2align 6
.amdhsa_kernel {NAME}_kernel
  .amdhsa_next_free_vgpr 256
  .amdhsa_next_free_sgpr 102
  .amdhsa_accum_offset 256
  .amdhsa_group_segment_fixed_size 0
  .amdhsa_kernarg_size 112
  .amdhsa_user_sgpr_count 2
  .amdhsa_user_sgpr_kernarg_segment_ptr 1
  .amdhsa_system_sgpr_workgroup_id_x 1
.end_amdhsa_kernel''')
    return a.text()

if __name__ == '__main__':
    sys.modules['gen2'] = sys.modules['__main__']
    cfg = Cfg()
    out = None
    for arg in sys.argv[1:]:
        if '=' in arg:
            k, v = arg.split('=', 1)
            cur = getattr(cfg, k)
            setattr(cfg, k, type(cur)(v) if not isinstance(cur, bool) else v == '1')
        else: out = arg
    t = build(cfg)
    for p in lint(t):
        print('HAZARD line %d -> %d need %d have %d\n   %s\n   %s' % p, file=sys.stderr)
    if out: open(out, 'w').write(t)
    else: print(t)
```

```python
from asmlib import vr, sr
import gen2 as G
from gen2 import *

def rows_to_ws(a, PT, T, L_Y, ws_base, srd_ws, tag, dry=None):
    a(f's_cmp_ge_u32 s{S_W}, 4\ns_cbranch_scc1 L_{tag}_yskip')
    a(f'v_lshlrev_b32 v{T}, 4, v0')
    for w in range(8):
        a(f'ds_read_b128 {vr(PT+4*w,4)}, v{T} offset:{L_Y + 4096*w}')
    row_addr(a, T + 1, T + 2, ws_base)
    a(f'v_mov_b32 v{T+2}, 0xffffff00')
    for w in range(1, 8):
        a(f's_waitcnt lgkmcnt({7-w})')
        for k in range(4):
            a(f'v_add_f32 v{PT+k}, v{PT+k}, v{PT+4*w+k}')
    tag24(a, PT, T + 2)
    if dry: a(f's_cmp_lg_u32 s{dry}, 0\ns_cbranch_scc1 L_{tag}_yskip')
    a(f'buffer_store_dwordx4 {vr(PT,4)}, v{T+1}, s[{srd_ws}:{srd_ws+3}], 0 offen sc1')
    a.label(f'L_{tag}_yskip')

def row_addr(a, v, t, ws_base):
    a(f'v_bfe_u32 v{v}, v0, 7, 1')
    a(f'v_lshlrev_b32 v{v}, 16, v{v}')
    a(f'v_and_b32 v{t}, 127, v0')
    a(f'v_lshl_add_u32 v{v}, v{t}, 4, v{v}')
    a(f's_lshl_b32 s63, s{S_H}, 11\ns_add_u32 s63, s63, {ws_base:#x}')
    a(f'v_add_u32 v{v}, s63, v{v}')

def final_addr(a, VA, VO, t, ws_base, out_col):
    a(f'v_bfe_u32 v{VA}, v{V_LANE}, 2, 3')
    a(f'v_lshlrev_b32 v{VA}, 11, v{VA}')
    a(f'v_and_b32 v{t}, 3, v{V_LANE}')
    a(f'v_lshrrev_b32 v{VO}, 5, v{V_LANE}')
    a(f'v_lshl_add_u32 v{t}, v{VO}, 2, v{t}')
    a(f'v_lshl_add_u32 v{VA}, v{t}, 4, v{VA}')
    a(f's_lshr_b32 s62, s{S_H}, 4\ns_and_b32 s63, s{S_H}, 15')
    a(f's_lshl_b32 s60, s62, 16\ns_lshl_b32 s61, s63, 7\ns_add_u32 s60, s60, s61\ns_add_u32 s60, s60, {ws_base:#x}')
    a(f'v_add_u32 v{VA}, s60, v{VA}')
    a(f's_lshl_b32 s60, s62, 11\ns_lshl_b32 s61, s63, 6\ns_add_u32 s60, s60, s61\ns_add_u32 s60, s60, {out_col*2}')
    a(f'v_lshl_add_u32 v{VO}, v{t}, 3, s60')

def final_sum(a, cfg, n, SETS, Y, VA, VO, T, srd_ws, tag, sleep, dry=None):
    a('s_mov_b32 s66, 0x4000\ns_mov_b32 s67, 0x8000\ns_mov_b32 s65, 0xc000')
    def load(j):
        for k in range(4):
            so = ('0', 's66', 's67', 's65')[k]
            a(f'buffer_load_dwordx4 {vr(SETS+16*j+4*k,4)}, v{VA}, s[{srd_ws}:{srd_ws+3}], {so} offen {cfg.lpol.replace("+", " ")}')
    def check(j, behind):
        for k in range(4):
            a(f's_waitcnt vmcnt({behind + 3 - k})')
            untag(a, Y + (4 if k else 0), T, k == 0, src=SETS + 16*j + 4*k)
            if k:
                for i in range(4): a(f'v_add_f32 v{Y+i}, v{Y+i}, v{Y+4+i}')
        bad_tags(a, T)
        for i in range(4):
            a(f'v_add_f32_dpp v{Y+i}, v{Y+i}, v{Y+i} row_ror:8 row_mask:0xf bank_mask:0xf')
    poll_sets(a, cfg, n, 4, load, check, sleep, tag + 'f')
    for i in range(4):
        a(f'v_add_f32_dpp v{Y+i}, v{Y+i}, v{Y+i} row_ror:4 row_mask:0xf bank_mask:0xf')
    for i in range(4): a(f'v_mov_b32 v{T+i}, v{Y+i}')
    for i in range(4): a(f'v_permlane16_swap_b32 v{Y+i}, v{T+i}')
    for i in range(4): a(f'v_add_f32 v{Y+i}, v{Y+i}, v{T+i}')
    a(f'v_cvt_pk_bf16_f32 v{Y}, v{Y}, v{Y+1}')
    a(f'v_cvt_pk_bf16_f32 v{Y+1}, v{Y+2}, v{Y+3}')
    if dry: a(f's_cmp_lg_u32 s{dry[0]}, 0\ns_cbranch_scc1 {dry[1]}')
    a('s_mov_b32 exec_lo, 15\ns_mov_b32 exec_hi, 15')
    a(f'global_store_dwordx2 v{VO}, {vr(Y,2)}, s[{P_OUT}:{P_OUT+1}] {cfg.opol.replace("+", " ")}'.rstrip())
    a('s_mov_b64 exec, -1')
    span_mark(a, cfg, True)

def project(a, O, T, AOP, Y, Wr):
    for s_ in range(4):
        a(f'v_cvt_pk_bf16_f32 v{T+s_}, v{O+s_}, v{O+s_}')
    for s_ in range(4):
        for k in range(4):
            a(f'v_and_b32 v{AOP+4*s_+k}, v{T+s_}, v{V_MASK+k}')
    for s_ in range(4):
        for cb in range(4):
            c = '0' if s_ == 0 else vr(Y+4*cb, 4)
            a(f'v_mfma_f32_16x16x32_bf16 {vr(Y+4*cb,4)}, {vr(AOP+4*s_,4)}, {vr(Wr+16*s_+4*cb,4)}, {c}')

def early_c(a, cfg, n):
    if not cfg.uc: return
    assert cfg.uni and cfg.crot and cfg.cblk
    a(f's_xor_b32 s60, s82, {cfg.rx}\ns_and_b32 s61, s60, 3\ns_lshl2_add_u32 s60, s60, s61\ns_lshl_b32 s60, s60, 5')
    a(f's_add_u32 s60, s60, s{S_W}\ns_add_u32 s60, s60, {8*n}\ns_lshl_b32 s60, s60, 12')
    srd(a, 84, P_BC, nrec=16 << 20)
    a(f'v_lshlrev_b32 v9, 4, v{V_LANE}')
    for i in range(4):
        if cfg.uc == 2: a('s_waitcnt vmcnt(3)')
        a(f'buffer_load_dwordx4 {vr(144 + 4*i, 4)}, v9, s[84:87], s60 offen offset:{1024*i}')

def role_W(a, cfg):
    L_QP, L_QB, L_CT, L_YB = 0, 8192, 9216, 18432
    L_CC = L_YB
    SRD_0, SRD_1, SRD_X, SRD_WS = 40, 44, 48, 52
    V_ZERO, V_OFF0, V_OFF1 = 8, 9, 10
    V_X, V_Q, V_A, V_Y, V_T = 12, 20, 28, 44, 60
    V_W0, V_W1, V_TMP = 64, 128, 192
    def flag_q():
        a(f's_lshl_b32 s62, s{S_H}, 7\ns_add_u32 s62, s62, {WS_FQ:#x}')
        a(f'v_mov_b32 v{V_TMP}, s62\nv_mov_b32 v{V_TMP+1}, s{S_TAG}')
        a('s_mov_b64 exec, 1')
        a('s_waitcnt vmcnt(0)')
        a(f'buffer_store_dword v{V_TMP+1}, v{V_TMP}, s[{SRD_WS}:{SRD_WS+3}], 0 offen sc1')
        a('s_mov_b64 exec, -1')
    a.label('L_roleW')
    if cfg.wc: a(f'v_and_b32 v{V_LANE}, 63, v0\ns_mov_b32 s{S_H}, s82')
    if cfg.late: a('s_waitcnt lgkmcnt(0)')
    early_c(a, cfg, 0)
    if cfg.skipB & 1:
        a(f'v_mov_b32 v{V_ZERO}, 0')
        srd(a, SRD_WS, P_WS, nrec=0x1000000)
        load_nonce(a)
        a('s_waitcnt lgkmcnt(0)')
        make_tag(a)
        a(f's_cmp_lg_u32 s{S_W}, 0\ns_cbranch_scc1 L_W_q')
        flag_q()
        a.label('L_W_q')
        if cfg.wr:
            kind, nw, sl, cnt, stride, lanes, hstride, delay, lsh = (cfg.wr.split(',') + ['135424', '0', '4'])[:9]
            a(f's_cmp_lg_u32 s{S_W}, 0\ns_cbranch_scc1 L_wr_end')
            a(f's_cmp_ge_u32 s{S_H}, {nw}\ns_cbranch_scc1 L_wr_end')
            for k in range(int(delay)): a('s_sleep 37')
            a(f's_mul_i32 s62, s{S_H}, {hstride}\ns_add_u32 s62, s62, 0xa00000')
            a(f'v_and_b32 v{V_TMP}, 3, v{V_LANE}')
            a(f'v_lshl_add_u32 v{V_TMP}, v{V_TMP}, 4, s62')
            a(f'v_lshrrev_b32 v{V_TMP+1}, 2, v{V_LANE}')
            a(f'v_lshl_add_u32 v{V_TMP}, v{V_TMP+1}, {int(lsh) + 2}, v{V_TMP}')
            a(f's_mov_b64 exec, {(1 << int(lanes)) - 1 if int(lanes) < 64 else -1}')
            a('s_mov_b32 s64, 0')
            a.label('L_wr')
            op = {'st': f'buffer_store_dwordx4 {vr(V_TMP+4,4)}', 'at': f'buffer_atomic_add v{V_TMP+4}', 'ld': f'buffer_load_dwordx4 {vr(V_TMP+8,4)}'}[kind[:2]]
            a(f'{op}, v{V_TMP}, s[{SRD_WS}:{SRD_WS+3}], 0 offen {kind[2:].replace("+", " ")}')
            a(f'v_add_u32 v{V_TMP}, {stride}, v{V_TMP}')
            a(f's_sleep {sl}')
            a('s_waitcnt vmcnt(8)')
            a(f's_add_u32 s64, s64, 1\ns_cmp_lt_u32 s64, {cnt}\ns_cbranch_scc1 L_wr')
            a.label('L_wr_end')
        a('s_endpgm')
        return
    a(f's_lshl_b32 s60, s{S_H}, 8')
    a(f's_sub_u32 s61, {512*8192:#x}, s60')
    srd(a, SRD_0, P_BWQ, off_s=60, nrec_s=61)
    srd(a, SRD_1, P_BWUK, off_s=60, nrec_s=61)
    srd(a, SRD_X, P_BX, nrec=2048)
    x_loads(a, SRD_X, V_X, V_TMP)
    rows_voff(a, V_OFF0)
    slice_loads(a, SRD_0, V_OFF0, V_W0, cfg.bpol, 'rows', cfg.wthr0)
    stamp(a, cfg, 0)
    a(f'v_mov_b32 v{V_ZERO}, 0')
    srd(a, SRD_WS, P_WS, nrec=0x1000000)
    load_nonce(a)
    lane_masks(a, V_TMP)
    a('s_barrier')
    a('s_waitcnt vmcnt(16)')
    def wuk_load(s_):
        if cfg.wthr1: a(f's_waitcnt vmcnt({cfg.wthr1 - 1})')
        row_load(a, SRD_1, V_OFF0, V_W1 + 4*s_, cfg.bpol, s_)
    rowcomb(a, V_X, V_W0, V_Y, V_A, V_TMP, 0, after=wuk_load)
    def head2(sh):
        if cfg.vx: a(f's_xor_b32 s60, s{S_H}, {cfg.vx}')
        a(f's_lshl_b32 s60, s{60 if cfg.vx else S_H}, {sh}')
    def wuv_loads():
        head2(8)
        a(f's_sub_u32 s61, {512*8192:#x}, s60')
        srd(a, SRD_0, P_BWUV, off_s=60, nrec_s=61)
        slice_loads(a, SRD_0, V_OFF0, V_W0, cfg.bpol, 'rows', cfg.wthr)
    q_reduce(a, V_Y, V_TMP, L_QP, L_QB, 'W')
    a(f'v_lshlrev_b32 v{V_TMP+2}, 4, v{V_C}')
    a(f'ds_read_b128 {vr(V_Q,4)}, v{V_TMP+2} offset:{L_QB}')
    a(f'ds_read_b128 {vr(V_Q+4,4)}, v{V_TMP+2} offset:{L_QB+256}')
    stamp(a, cfg, 1)
    if cfg.wearly:
        assert not cfg.wthr
        wuv_loads()
    def wo_srd():
        head2(17)
        a(f's_mov_b32 s61, {128*1024:#x}')
        srd(a, SRD_1, P_BWO, off_s=60, nrec_s=61)
        wo_voff(a, V_OFF1)
    if cfg.wearly > 1: wo_srd()
    R0, R1 = V_TMP + 8, V_TMP + 9
    a(f'v_mov_b32 v{R0}, 0\nv_mov_b32 v{R1}, 0')
    a(f's_lshr_b32 s62, s{S_WX}, 13')
    a(f'v_xor_b32 v{V_TMP+10}, s62, v{V_C}')
    a('s_waitcnt lgkmcnt(0)')
    make_tag(a)
    for i in range(0, 16, 2):
        a(f's_waitcnt vmcnt({14 - i + (16 if cfg.wearly else 0) + (i if cfg.wearly > 1 else 0)})')
        T = [V_T + n for n in range(4)]
        for k in range(4):
            for n in range(4):
                wreg = V_W1 + 4*(i + n//2) + k
                q = V_Q + 4*(n % 2) + k
                c = '0' if k == 0 else f'v{T[n]}'
                a(f'v_dot2_f32_bf16 v{T[n]}, v{wreg}, v{q}, {c}')
        if cfg.wearly > 1:
            assert not cfg.clu & 4
            for n in (i, i + 1):
                a(f'buffer_load_dwordx4 {vr(V_W1+4*n,4)}, v{V_OFF1}, s[{SRD_1}:{SRD_1+3}], 0 offen offset:{(n//4)*1024+(n%4)*256} {cfg.bpol}')
        for st in (8, 4, 2, 1):
            for n in range(4):
                a(f'v_add_f32_dpp v{T[n]}, v{T[n]}, v{T[n]} row_ror:{st} row_mask:0xf bank_mask:0xf')
        for n in range(4):
            if n % 2 == 0:
                a(f'v_cmp_eq_u32 vcc, {i + n//2}, v{V_TMP+10}')
                a('s_nop 1')
            r = R0 if n % 2 == 0 else R1
            a(f'v_cndmask_b32 v{r}, v{r}, v{T[n]}, vcc')
    a(f'v_cvt_pk_bf16_f32 v{R0}, v{R0}, v{R0}')
    a(f'v_cvt_pk_bf16_f32 v{R1}, v{R1}, v{R1}')
    a(f'v_lshlrev_b32 v{V_TMP}, 1, v0')
    a(f'ds_write_b16 v{V_TMP}, v{R0} offset:{L_QP}')
    a(f'ds_write_b16 v{V_TMP}, v{R1} offset:{L_QP + 1024}')
    a('s_waitcnt lgkmcnt(0)\ns_barrier')
    a(f's_cmp_lg_u32 s{S_W}, 0\ns_cbranch_scc1 L_W_q')
    a(f'v_lshlrev_b32 v{V_TMP}, 4, v{V_LANE}')
    a(f'ds_read_b128 {vr(V_Q,4)}, v{V_TMP} offset:{L_QP}')
    a(f'ds_read_b128 {vr(V_Q+4,4)}, v{V_TMP} offset:{L_QP + 1024}')
    a(f's_lshl_b32 s62, s{S_H}, 10\ns_add_u32 s62, s62, {WS_QABS:#x}\ns_add_u32 s63, s62, {32*1024}')
    a('s_waitcnt lgkmcnt(0)')
    a(f'buffer_store_dwordx4 {vr(V_Q,4)}, v{V_TMP}, s[{SRD_WS}:{SRD_WS+3}], s62 offen sc1')
    a(f'buffer_store_dwordx4 {vr(V_Q+4,4)}, v{V_TMP}, s[{SRD_WS}:{SRD_WS+3}], s63 offen sc1')
    flag_q()
    a.label('L_W_q')
    stamp(a, cfg, 2)
    if not cfg.wearly: wuv_loads()
    if cfg.wearly < 2:
        wo_srd()
        slice_loads(a, SRD_1, V_OFF1, V_W1, cfg.bpol, 'wo', cfg.wthr)
    a('s_waitcnt vmcnt(0)')
    if cfg.vx: a(f's_xor_b32 s{S_H}, s{S_H}, {cfg.vx}')
    final_addr(a, V_OFF0, V_OFF1, V_TMP, WS_YB, 512)
    if cfg.lead: span_mark(a, cfg, 'lead')
    if cfg.dbgst:
        a('s_cmp_ge_u32 s2, 8\ns_cbranch_scc1 L_dbgst')
        a('s_getreg_b32 s90, hwreg(20, 0, 16)\ns_and_b32 s96, s96, 0xffff\ns_lshl_b32 s92, s2, 2')
        a('v_mov_b32 v252, s96\nv_mov_b32 v253, s90\nv_mov_b32 v250, s92')
        a(f'global_store_dword v250, v252, s[{P_DBG}:{P_DBG+1}]\nglobal_store_dword v250, v253, s[{P_DBG}:{P_DBG+1}] offset:32')
        a.label('L_dbgst')
    stamp(a, cfg, 3)
    if cfg.skipB & 2 or cfg.dg & 2: a('s_branch L_W_end')
    S_DRY = 37
    a(f's_mov_b32 s{S_DRY}, {SPIN_LIMIT if cfg.wdry else 0}')
    S_B, S_Q4 = 35, 36
    a(f's_lshr_b32 s{S_B}, s{S_W}, 2')
    a(f's_and_b32 s{S_Q4}, s{S_W}, 3')
    if cfg.wdry: a('s_branch L_W_merge')
    a.label('L_W_poll')
    a(f's_lshl_b32 s63, s{S_H}, 4\ns_add_u32 s63, s63, {WS_CSTAT:#x}')
    a(f'v_lshl_add_u32 v{V_TMP}, v{V_LANE}, 9, s63')
    wait_flags(a, cfg, lambda: a(f'buffer_load_dwordx4 {vr(V_TMP+4,4)}, v{V_TMP}, s[{SRD_WS}:{SRD_WS+3}], 0 offen sc1'),
               lambda: (untag(a, V_TMP + 4, V_TMP + 1), bad_tags(a, V_TMP + 1)), 'Wc')
    stamp(a, cfg, 4)
    if cfg.dg & 4: a('s_branch L_W_end')
    a(f's_lshl_b32 s62, s{S_B}, 13\ns_add_u32 s63, s63, s62')
    a(f'v_lshl_add_u32 v{V_TMP}, v{V_C}, 9, s63')
    a(f'buffer_load_dwordx4 {vr(V_TMP+4,4)}, v{V_TMP}, s[{SRD_WS}:{SRD_WS+3}], 0 offen sc1')
    a(f's_lshl_b32 s62, s{S_B}, 5\ns_add_u32 s62, s62, s{S_H}')
    a(f's_lshl_b32 s63, s62, 14\ns_add_u32 s63, s63, {WS_CPART:#x}')
    a(f's_lshl_b32 s64, s{S_Q4}, 12\ns_add_u32 s63, s63, s64')
    a(f'v_lshl_add_u32 v{V_TMP+1}, v{V_LANE}, 4, s63')
    PT = V_TMP + 8
    for kk in range(4):
        a(f'buffer_load_dwordx4 {vr(PT+4*kk,4)}, v{V_TMP+1}, s[{SRD_WS}:{SRD_WS+3}], 0 offen offset:{(kk & 2 if cfg.dg & 32 else kk)*1024} {cfg.ppol.replace("+", " ").replace("plain", "")}')
    a.label('L_W_merge')
    a('s_mov_b32 s60, 0x07060302')
    a('s_waitcnt vmcnt(4)')
    m, l, M, e = V_TMP + 2, V_TMP + 3, V_TMP + 4, V_TMP + 5
    a(f'v_perm_b32 v{m}, v{V_TMP+4}, v{V_TMP+5}, s60')
    a(f'v_perm_b32 v{l}, v{V_TMP+6}, v{V_TMP+7}, s60')
    a(f'v_mov_b32 v{M}, v{m}')
    for st in (8, 4, 2, 1):
        a.nop(2)
        a(f'v_max_f32_dpp v{M}, v{M}, v{M} row_ror:{st} row_mask:0xf bank_mask:0xf')
    a(f'v_sub_f32 v{e}, v{m}, v{M}')
    a(f'v_exp_f32 v{e}, v{e}')
    a('s_nop 0')
    a(f'v_mul_f32 v{l}, v{l}, v{e}')
    for st in (8, 4, 2, 1):
        a.nop(2)
        a(f'v_add_f32_dpp v{l}, v{l}, v{l} row_ror:{st} row_mask:0xf bank_mask:0xf')
    a(f'v_rcp_f32 v{l}, v{l}')
    a('s_nop 0')
    a(f'v_mul_f32 v{e}, v{e}, v{l}')
    a(f's_lshl_b32 s64, s{S_Q4}, 2')
    for kk in range(4):
        a(f's_add_u32 s65, s64, {kk}')
        a(f'v_readlane_b32 s{66+kk}, v{e}, s65')
    ACC = V_TMP + 40
    UP = PT + 16
    for kk in range(4):
        a(f's_waitcnt vmcnt({3-kk})')
        for k in range(4):
            a(f'v_lshlrev_b32 v{UP+2*k}, 16, v{PT+4*kk+k}')
            a(f'v_and_b32 v{UP+2*k+1}, 0xffff0000, v{PT+4*kk+k}')
        for k in range(8):
            if kk == 0: a(f'v_mul_f32 v{ACC+k}, s{66+kk}, v{UP+k}')
            else: a(f'v_fma_f32 v{ACC+k}, v{UP+k}, s{66+kk}, v{ACC+k}')
    a(f's_lshl_b32 s62, s{S_W}, 11')
    a(f'v_lshl_add_u32 v{V_TMP}, v{V_LANE}, 5, s62')
    a(f'ds_write_b128 v{V_TMP}, {vr(ACC,4)} offset:{L_CC}')
    a(f'ds_write_b128 v{V_TMP}, {vr(ACC+4,4)} offset:{L_CC+16}')
    a('s_waitcnt lgkmcnt(0)\ns_barrier')
    a(f'v_lshrrev_b32 v{V_TMP}, 3, v{V_C}')
    a(f'v_lshlrev_b32 v{V_TMP}, 13, v{V_TMP}')
    a(f'v_lshl_add_u32 v{V_TMP}, v{V_G}, 6, v{V_TMP}')
    a(f's_lshl_b32 s62, s{S_W}, 8\ns_lshr_b32 s63, s{S_WX}, 11\ns_add_u32 s62, s62, s63')
    a(f'v_add_u32 v{V_TMP}, s62, v{V_TMP}')
    for q4 in range(1, 4): a(f'v_xor_b32 v{V_TMP+q4}, {16*q4}, v{V_TMP}')
    for hf in range(2):
        for q4 in range(4):
            a(f'ds_read_b128 {vr(PT+16*hf+4*q4,4)}, v{V_TMP+q4} offset:{L_CC + 2048*hf}')
    a('s_waitcnt lgkmcnt(0)')
    for i in range(16):
        a(f'v_add_f32 v{PT+i}, v{PT+i}, v{PT+16+i}')
    for hf in range(2, 4):
        for q4 in range(4):
            a(f'ds_read_b128 {vr(PT+16+4*q4,4)}, v{V_TMP+q4} offset:{L_CC + 2048*hf}')
        a('s_waitcnt lgkmcnt(0)')
        for i in range(16):
            a(f'v_add_f32 v{PT+i}, v{PT+i}, v{PT+16+i}')
    for i in range(8):
        a(f'v_cvt_pk_bf16_f32 v{V_X+i}, v{PT+2*i}, v{PT+2*i+1}')
    rowcomb(a, V_X, V_W0, V_Y, V_A, V_TMP, 63)
    dtile_to_lds(a, V_Y, V_TMP, L_CT, 10, 9, 1)
    a('s_waitcnt lgkmcnt(0)\ns_barrier')
    a(f'v_lshrrev_b32 v{V_TMP}, 3, v{V_C}')
    a(f'v_lshlrev_b32 v{V_TMP}, 9, v{V_TMP}')
    a(f'v_lshl_add_u32 v{V_TMP}, v{V_G}, 4, v{V_TMP}')
    a(f's_lshl_b32 s62, s{S_W}, 6')
    a(f'v_add_u32 v{V_TMP}, s62, v{V_TMP}')
    for w in range(8):
        a(f'ds_read_b128 {vr(PT+4*w,4)}, v{V_TMP} offset:{L_CT + 1024*w}')
    for w in range(1, 8):
        a(f's_waitcnt lgkmcnt({7-w})')
        for k in range(4):
            a(f'v_add_f32 v{PT+k}, v{PT+k}, v{PT+4*w+k}')
    project(a, PT, V_T, V_A, V_Y, V_W1)
    dtile_to_lds(a, V_Y, V_TMP, L_YB, 12, 11, 4)
    a('s_waitcnt lgkmcnt(0)\ns_barrier')
    if cfg.dg & 8: a(f's_cmp_eq_u32 s{S_DRY}, 0\ns_cbranch_scc1 L_W_end')
    rows_to_ws(a, PT, V_TMP, L_YB, WS_YB, SRD_WS, 'W', S_DRY if cfg.wdry else None)
    stamp(a, cfg, 5)
    if cfg.dg & 16: a(f's_cmp_eq_u32 s{S_DRY}, 0\ns_cbranch_scc1 L_W_end')
    a(f's_cmp_lg_u32 s{S_W}, 4\ns_cbranch_scc1 L_W_fin')
    a(f's_mov_b32 s64, s{S_DRY}')
    final_sum(a, cfg, cfg.np3, V_X, PT, V_OFF0, V_OFF1, V_TMP, SRD_WS, 'W', cfg.wsleep, (S_DRY, 'L_W_fin') if cfg.wdry else None)
    stamp(a, cfg, 6)
    a.label('L_W_fin')
    if cfg.wdry:
        a(f's_cmp_eq_u32 s{S_DRY}, 0\ns_cbranch_scc1 L_W_end')
        a(f's_mov_b32 s{S_DRY}, 0\ns_waitcnt vmcnt(0)\ns_branch L_W_poll')
    a.label('L_W_end')
    stamp_flush(a, cfg)
    a('s_endpgm')

def role_C(a, cfg):
    TS = 1056
    BUF = 64 * TS
    L_TMAX, L_P = 0, 512
    PS = 144
    L_T0 = 5120
    L_T1 = L_T0 + BUF
    L_QP = L_T1 + BUF
    assert L_P + 32*PS <= L_T0 and L_QP + 8192 <= LDS_BYTES
    SRD_C, SRD_WS, SRD_W, SRD_X = 40, 44, 68, 72
    S_B, S_KB, S_HB, S_LB, S_IT, S_BUF = 35, 36, 37, 38, 39, 48
    S_LO, S_HI, S_STG, S_TN, S_TX = 49, 51, 52, 53, 54
    V_ZERO, V_COFF, V_SA, V_TA, V_PW, V_PR, V_TW, V_TRS, V_TRP = 8, 9, 10, 11, 12, 13, 14, 15, 16
    V_SC, V_MS, V_MP, V_LS, V_AL = 17, 18, 19, 20, 21
    V_T = 24
    V_SD = 28
    V_Q = 32
    V_ACC = 96
    V_SF = 128
    V_PB = 192
    V_TF = 128
    V_STG = 208
    V_TMP = 240
    V_STA, V_STW = 22, 23
    def wait_q(tag):
        a(f'v_lshlrev_b32 v{V_TMP}, 7, v{V_LANE}')
        a(f'v_add_u32 v{V_TMP}, {WS_FQ:#x}, v{V_TMP}')
        wait_flags(a, cfg, lambda: a(f'buffer_load_dword v{V_TMP+1}, v{V_TMP}, s[{SRD_WS}:{SRD_WS+3}], 0 offen sc1'),
                   lambda: a(f'v_cmp_ne_u32 vcc, s{S_TAG}, v{V_TMP+1}'), tag)
    def ctr_addr(v):
        if cfg.quad:
            a(f's_andn2_b32 s62, s{S_H}, {3 if cfg.wgt else 0}')
            a(f's_mul_i32 s62, s62, {2*cfg.cstep:#x}\ns_add_u32 s62, s62, {WS_CTR:#x}')
            a(f'v_mul_u32_u24 v{v}, {cfg.cstep:#x}, v{V_LANE}')
            a(f'v_add_u32 v{v}, s62, v{v}')
        else:
            a(f's_lshl_b32 s62, s{S_H}, 13\ns_add_u32 s62, s62, {WS_OA + 6*1024:#x}')
            a(f'v_lshl_add_u32 v{v}, v{V_LANE}, 7, s62')
    a.label('L_roleC')
    if cfg.wc: a(f'v_and_b32 v{V_LANE}, 63, v0\ns_xor_b32 s{S_H}, s82, {cfg.rx}')
    if cfg.late: a('s_waitcnt lgkmcnt(0)')
    early_c(a, cfg, 1)
    V_X, V_A, V_Y = V_Q, V_Q + 8, V_Q + 16
    a(f's_lshl_b32 s60, s{S_H}, 8')
    a(f's_sub_u32 s61, {512*8192:#x}, s60')
    srd(a, SRD_W, P_AWQ, off_s=60, nrec_s=61)
    srd(a, SRD_X, P_AX, nrec=2048)
    x_loads(a, SRD_X, V_X, V_TMP)
    rows_voff(a, V_COFF)
    slice_loads(a, SRD_W, V_COFF, V_SF, cfg.wqpol, 'rows', cfg.qthr)
    stamp(a, cfg, 0)
    load_nonce(a)
    srd(a, SRD_WS, P_WS, nrec=0x1000000)
    if cfg.deal == 'glob':
        a(f's_cmp_lg_u32 s{S_W}, 6\ns_cbranch_scc1 L_C_ctr')
        if cfg.quad and cfg.wgt: a(f's_and_b32 s62, s{S_H}, 3\ns_cbranch_scc1 L_C_ctr')
        a(f'v_mov_b32 v{V_PB}, -1')
        ctr_addr(V_TMP)
        a(f's_mov_b64 exec, {0xff if cfg.col else 3 if cfg.quad and not cfg.wgt else 1}')
        a(f'buffer_store_dword v{V_PB}, v{V_TMP}, s[{SRD_WS}:{SRD_WS+3}], 0 offen sc1')
        if cfg.sig: a(f'buffer_store_dword v{V_PB}, v{V_TMP}, s[{SRD_WS}:{SRD_WS+3}], 0 offen offset:1024 sc1')
        for k in range(len(cfg.rk.split(',')) if cfg.rk else 0):
            a(f'buffer_store_dword v{V_PB}, v{V_TMP}, s[{SRD_WS}:{SRD_WS+3}], 0 offen offset:{0x200 + 0x80*k} sc1')
        a('s_mov_b64 exec, -1')
        a.label('L_C_ctr')
    lane_masks(a, V_TMP + 2)
    a(f'v_mov_b32 v{V_ZERO}, 0')
    a(f's_lshr_b32 s{S_B}, s{S_H}, 4')
    a(f's_lshr_b32 s{S_KB}, s{S_W}, 1\ns_and_b32 s{S_HB}, s{S_W}, 1')
    TSH = 17 if cfg.cilv else 16
    a(f's_lshr_b32 s60, s{S_H}, {TSH - 16}\ns_lshl_b32 s60, s60, {TSH + 3}')
    a(f's_mov_b32 s61, {8 << TSH:#x}')
    srd(a, SRD_C, P_BC, off_s=60, nrec_s=61)
    dtile_addr(a, V_TMP + 2, 10, 9)
    a(f'v_add_u32 v{V_TMP+2}, {L_QP}, v{V_TMP+2}')
    a(f'v_lshlrev_b32 v{V_TMP+3}, 4, v{V_LANE}')
    a(f's_lshl_b32 s62, s{S_H}, 10\ns_add_u32 s62, s62, {WS_QA:#x}')
    a(f'v_add_u32 v{V_TMP+4}, s62, v{V_TMP+3}')
    a(f'v_add_u32 v{V_TMP+3}, {L_QP}, v{V_TMP+3}')
    a('s_waitcnt vmcnt(16) lgkmcnt(0)')
    make_tag(a)
    a(f'v_mov_b32 v{V_TMP+5}, s{S_TAG}')
    rowcomb(a, V_X, V_SF, V_Y, V_A, V_TMP, 0)
    a.nop(8)
    a(f'ds_write_b128 v{V_TMP+2}, {vr(V_Y,4)}')
    a('s_waitcnt lgkmcnt(0)\ns_barrier')
    a(f's_cmp_lg_u32 s{S_W}, 0\ns_cbranch_scc1 L_C_qs')
    for w in range(8):
        a(f'ds_read_b128 {vr(V_SF+4*w,4)}, v{V_TMP+3} offset:{1024*w}')
    a('s_mov_b32 s60, 0x05040100\ns_mov_b32 s61, 0x07060302')
    for w in range(1, 8):
        a(f's_waitcnt lgkmcnt({7-w})')
        for k in range(4):
            a(f'v_add_f32 v{V_SF+k}, v{V_SF+k}, v{V_SF+4*w+k}')
    a(f'v_cvt_pk_bf16_f32 v{V_SF}, v{V_SF}, v{V_SF+1}')
    a(f'v_cvt_pk_bf16_f32 v{V_SF+1}, v{V_SF+2}, v{V_SF+3}')
    for k in range(4):
        a(f'v_perm_b32 v{V_SF+4+k}, v{V_SF+k//2}, v{V_TMP+5}, s{60+k%2}')
    a(f'buffer_store_dwordx4 {vr(V_SF+4,4)}, v{V_TMP+4}, s[{SRD_WS}:{SRD_WS+3}], 0 offen sc1')
    a.label('L_C_qs')
    stamp(a, cfg, 1)
    HI = 32 if cfg.cblk else 4
    WR = 4 if cfg.cblk else 8
    a(f'v_lshlrev_b32 v{V_COFF}, 4, v{V_LANE}')
    a(f's_mul_i32 s62, s{S_W}, {WR*1024}')
    a(f'v_add_u32 v{V_COFF}, s62, v{V_COFF}')
    if cfg.clu & 1:
        a(f's_lshl_b32 s62, s{S_W}, 11')
        a(f'v_lshl_add_u32 v{V_COFF}, v{V_C}, 4, s62')
        g_bits(a, V_COFF, V_XA, 1 << 15 | 1 << 8, 1 << 16 | 1 << 9)
    a(f's_mul_i32 s{S_LB}, s{S_W}, {WR*TS}')
    if cfg.cilv: a(f's_and_b32 s{S_TX}, s{S_H}, {3 if cfg.crot else 1}\ns_lshl_b32 s{S_TX}, s{S_TX}, 16')
    elif cfg.crot: a(f's_and_b32 s{S_TX}, s{S_H}, 3\ns_lshl_b32 s{S_TX}, s{S_TX}, 17')
    else: a(f's_mov_b32 s{S_TX}, 0')
    a(f's_mov_b32 s{S_TN}, 0')
    assert not cfg.cilv
    a(f's_lshl_b32 s60, s{S_H}, 17\ns_mov_b32 s61, {128*1024:#x}')
    srd(a, SRD_W, P_AWO, off_s=60, nrec_s=61)
    def next_tile():
        a(f's_cmp_lt_u32 s{S_TN}, {8 << TSH:#x}')
        for k in range(3): a(f's_cselect_b32 s{SRD_C+k}, s{SRD_C+k}, s{SRD_W+k}')
        a(f's_cselect_b32 s{S_TX}, s{S_TX}, 0')
        if cfg.clu & 1:
            a(f's_and_b32 s{S_LO}, s{S_TN}, {6 << TSH:#x}\ns_bfe_u32 s{S_HI}, s{S_TN}, {1 << 16 | TSH:#x}')
            a(f's_lshl_b32 s{S_HI}, s{S_HI}, 14\ns_or_b32 s{S_LO}, s{S_LO}, s{S_HI}')
        else: a(f's_and_b32 s{S_LO}, s{S_TN}, {7 << TSH:#x}')
        a(f's_xor_b32 s{S_LO}, s{S_LO}, s{S_TX}')
        a(f's_add_u32 s{S_HI}, s{S_LO}, {1024 if cfg.clu & 1 else HI*1024}')
        a(f's_add_u32 s{S_TN}, s{S_TN}, {1 << TSH:#x}')
    def lrow(i): return (i // 4) * HI + i % 4
    def dma():
        next_tile()
        for i in range(8):
            lo = i % 4
            if cfg.cthr: a(f's_waitcnt vmcnt({cfg.cthr-1})')
            if cfg.clu & 1:
                a(f's_add_u32 m0, s50, {lrow(i)*TS}')
                a(f'v_xor_b32 v{V_XA + (i & 1)}, {lo*256}, v{V_COFF}')
                a(f'buffer_load_dwordx4 v{V_XA + (i & 1)}, s[{SRD_C}:{SRD_C+3}], s{S_LO if i < 4 else S_HI} offen {cfg.cpol} lds')
                continue
            a(f's_add_u32 m0, s50, {lrow(i)*TS - lo*1024}')
            a('s_nop 0')
            a(f'buffer_load_dwordx4 v{V_COFF}, s[{SRD_C}:{SRD_C+3}], s{S_LO if i < 4 else S_HI} offen offset:{lo*1024} {cfg.cpol} lds')
    if cfg.skipB & 2: a(f's_mov_b32 s{S_TN}, {8 << TSH:#x}')
    def first_tile(t):
        if t < 2:
            a(f's_add_u32 s50, s{S_LB}, {(L_T0, L_T1)[t]}'); dma()
            return
        next_tile()
        for i in range(8):
            if cfg.cthr: a(f's_waitcnt vmcnt({cfg.cthr-1})')
            stage_load(i)
    def stage_load(i):
        if cfg.clu & 1:
            a(f'v_xor_b32 v{V_XA + (i & 1)}, {(i%4)*256}, v{V_COFF}')
            a(f'buffer_load_dwordx4 {vr(V_STG+4*i,4)}, v{V_XA + (i & 1)}, s[{SRD_C}:{SRD_C+3}], s{S_LO if i < 4 else S_HI} offen {cfg.cpol}')
            return
        a(f'buffer_load_dwordx4 {vr(V_STG+4*i,4)}, v{V_COFF}, s[{SRD_C}:{SRD_C+3}], s{S_LO if i < 4 else S_HI} offen offset:{(i%4)*1024} {cfg.cpol}')
    for t in (0, 2) if cfg.skipB & 2 else range(3 - cfg.clate): first_tile(t)
    a(f's_add_u32 s62, s{S_LB}, {L_T0}')
    a(f'v_lshl_add_u32 v{V_STA}, v{V_LANE}, 4, s62')
    a(f's_lshl_b32 s62, s{S_KB}, 4')
    a(f'v_add_u32 v{V_TMP}, s62, v{V_C}')
    a(f'v_mul_u32_u24 v{V_SA}, {TS}, v{V_TMP}')
    a(f'v_lshl_add_u32 v{V_SA}, v{V_G}, 4, v{V_SA}')
    a(f'v_add_u32 v{V_SA}, {L_T0}, v{V_SA}')
    a(f'v_lshrrev_b32 v{V_TMP}, 1, v{V_G}')
    a(f'v_lshlrev_b32 v{V_TMP}, 3, v{V_TMP}')
    a(f'v_lshrrev_b32 v{V_TMP+1}, 2, v{V_C}')
    a(f'v_add_u32 v{V_TMP}, v{V_TMP}, v{V_TMP+1}')
    a(f'v_mul_u32_u24 v{V_TA}, {TS}, v{V_TMP}')
    a(f'v_and_b32 v{V_TMP}, 1, v{V_G}')
    a(f'v_lshl_add_u32 v{V_TA}, v{V_TMP}, 5, v{V_TA}')
    a(f'v_and_b32 v{V_TMP}, 3, v{V_C}')
    a(f'v_lshl_add_u32 v{V_TA}, v{V_TMP}, 3, v{V_TA}')
    a(f's_lshl_b32 s62, s{S_W}, 7\ns_add_u32 s62, s62, {L_T0}')
    a(f'v_add_u32 v{V_TA}, s62, v{V_TA}')
    a(f's_lshl_b32 s62, s{S_HB}, 4')
    a(f'v_add_u32 v{V_TMP}, s62, v{V_C}')
    a(f'v_mul_u32_u24 v{V_PW}, {PS}, v{V_TMP}')
    a(f'v_lshl_add_u32 v{V_PW}, v{V_G}, 3, v{V_PW}')
    a(f's_lshl_b32 s62, s{S_KB}, 5')
    a(f'v_add_u32 v{V_PW}, s62, v{V_PW}')
    a(f'v_lshlrev_b32 v{V_TRS}, 4, v{V_TMP}')
    a(f's_lshl_b32 s62, s{S_KB}, 2')
    a(f'v_add_u32 v{V_TW}, s62, v{V_TRS}')
    a(f'v_and_b32 v{V_TMP}, 31, v{V_LANE}')
    a(f'v_mul_u32_u24 v{V_PR}, {PS}, v{V_TMP}')
    a(f'v_lshrrev_b32 v{V_TMP+1}, 5, v{V_LANE}')
    a(f'v_lshl_add_u32 v{V_PR}, v{V_TMP+1}, 4, v{V_PR}')
    a(f'v_lshlrev_b32 v{V_TRP}, 4, v{V_TMP}')
    a(f'v_mov_b32 v{V_SC}, {f2u(SCALE):#x}')
    a(f'v_mov_b32 v{V_MS}, 0xff800000\nv_mov_b32 v{V_MP}, 0xff800000\nv_mov_b32 v{V_LS}, 0')
    for k in range(32): a(f'v_mov_b32 v{V_ACC+k}, 0')
    if cfg.qlds:
        a(f'v_lshrrev_b32 v{V_TMP}, 5, v{V_LANE}')
        a(f's_lshl_b32 s62, s{S_W}, 2')
        a(f'v_add_u32 v{V_TMP}, s62, v{V_TMP}')
        a(f'v_and_b32 v{V_TMP+1}, 31, v{V_LANE}')
        a(f'v_lshlrev_b32 v{V_TMP+1}, 4, v{V_TMP+1}')
        a(f'v_lshl_add_u32 v{V_TMP+2}, v{V_TMP}, 10, v{V_TMP+1}')
        a(f's_lshl_b32 s62, s{S_B}, 15\ns_add_u32 s62, s62, {WS_QABS:#x}')
        a(f'v_add_u32 v{V_TMP+2}, s62, v{V_TMP+2}')
        a(f'v_mul_u32_u24 v{V_TMP+3}, 528, v{V_TMP}')
        a(f'v_add_u32 v{V_TMP+3}, v{V_TMP+3}, v{V_TMP+1}')
        a(f'v_add_u32 v{V_TMP+3}, {L_QP}, v{V_TMP+3}')
        a(f's_lshl_b32 s62, s{S_HB}, 4')
        a(f'v_add_u32 v{V_TMP}, s62, v{V_C}')
        a(f'v_mul_u32_u24 v{V_TMP+4}, 528, v{V_TMP}')
        a(f'v_lshl_add_u32 v{V_TMP+4}, v{V_G}, 4, v{V_TMP+4}')
        a(f'v_add_u32 v{V_TMP+4}, {L_QP}, v{V_TMP+4}')
    wait_q('Cq')
    if cfg.skipB & 2: a('s_waitcnt vmcnt(0)\ns_branch L_C_tail')
    stamp(a, cfg, 2)
    for t in range(3 - cfg.clate, 3): first_tile(t)
    if cfg.qlds:
        QS = 528
        assert L_QP + 32*QS <= LDS_BYTES
        for j in range(4):
            a(f'buffer_load_dwordx4 {vr(V_SF+4*j,4)}, v{V_TMP+2}, s[{SRD_WS}:{SRD_WS+3}], 0 offen offset:{(j&1)*2048 + (j>>1)*512} sc1')
        for p in range(2):
            a(f's_waitcnt vmcnt({2 - 2*p})')
            if p: a('s_waitcnt lgkmcnt(0)\ns_barrier')
            for j in range(2): a(f'ds_write_b128 v{V_TMP+3}, {vr(V_SF+8*p+4*j,4)} offset:{2*QS*j}')
            a('s_waitcnt lgkmcnt(0)\ns_barrier')
            for s_ in range(8): a(f'ds_read_b128 {vr(V_Q+32*p+4*s_,4)}, v{V_TMP+4} offset:{64*s_}')
    else:
        a(f's_lshl_b32 s62, s{S_B}, 5\ns_lshl_b32 s63, s{S_HB}, 4\ns_add_u32 s62, s62, s63')
        a(f'v_add_u32 v{V_TMP}, s62, v{V_C}')
        a(f'v_lshlrev_b32 v{V_TMP}, 10, v{V_TMP}')
        a(f'v_lshl_add_u32 v{V_TMP}, v{V_G}, 4, v{V_TMP}')
        if WS_QABS: a(f'v_add_u32 v{V_TMP}, {WS_QABS:#x}, v{V_TMP}')
        for s_ in range(16):
            a(f'buffer_load_dwordx4 {vr(V_Q+4*s_,4)}, v{V_TMP}, s[{SRD_WS}:{SRD_WS+3}], 0 offen offset:{64*s_} sc1')
    a(f's_mov_b32 s{S_IT}, 0\ns_mov_b32 s{S_BUF}, 0')
    a('s_waitcnt vmcnt(0)')
    stamp(a, cfg, 3)
    a('.p2align 6')
    a.label('L_C_loop')
    a('s_waitcnt lgkmcnt(0)\ns_barrier')
    a(f's_mov_b32 s{S_STG}, 1')
    a(f's_cmp_eq_u32 s{S_IT}, 0\ns_cselect_b32 s{S_STG}, 0, s{S_STG}')
    a(f's_sub_u32 s50, {BUF}, s{S_BUF}')
    a(f'v_add_u32 v{V_STW}, s50, v{V_STA}')
    nstage = [0]
    def stage(rows):
        if not rows: return
        lab = f'L_C_st{nstage[0]}'; nstage[0] += 1
        a(f's_cmp_eq_u32 s{S_STG}, 0\ns_cbranch_scc1 {lab}')
        if rows[0] == 0: next_tile()
        for i in rows:
            a('s_waitcnt vmcnt(7)')
            a(f'ds_write_b128 v{V_STW}, {vr(V_STG+4*i,4)} offset:{lrow(i)*TS}')
            stage_load(i)
        a.label(lab)
    groups = [[0, 1], [2, 3], [4, 5], [6, 7]] if cfg.cspread else [list(range(8)), [], [], []]
    stage(groups[0])
    a(f'v_add_u32 v{V_TMP}, s{S_BUF}, v{V_SA}')
    a(f'v_add_u32 v{V_TMP+1}, s{S_BUF}, v{V_TA}')
    for s_ in range(16):
        a(f'ds_read_b128 {vr(V_SF+4*s_,4)}, v{V_TMP} offset:{64*s_}')
    for s_ in range(16):
        a(f's_waitcnt lgkmcnt({15-s_})')
        c = '0' if s_ == 0 else vr(V_SD, 4)
        a(f'v_mfma_f32_16x16x32_bf16 {vr(V_SD,4)}, {vr(V_SF+4*s_,4)}, {vr(V_Q+4*s_,4)}, {c}')
    stage(groups[1])
    a.nop(8)
    for i in range(4): a(f'v_mul_f32 v{V_T+i}, v{V_SD+i}, v{V_SC}')
    a(f'v_max3_f32 v{V_TMP+2}, v{V_T}, v{V_T+1}, v{V_T+2}')
    a(f'v_max_f32 v{V_TMP+2}, v{V_TMP+2}, v{V_T+3}')
    xrow_allreduce(a, 'v_max_f32', V_TMP+2, V_TMP+3)
    a('s_mov_b64 exec, 0xffff')
    a(f'ds_write_b32 v{V_TW}, v{V_TMP+2} offset:{L_TMAX}')
    a('s_mov_b64 exec, -1')
    a('s_waitcnt lgkmcnt(0)\ns_barrier')
    a(f'ds_read_b128 {vr(V_PB,4)}, v{V_TRS} offset:{L_TMAX}')
    a(f'ds_read_b128 {vr(V_PB+4,4)}, v{V_TRP} offset:{L_TMAX}')
    a('s_waitcnt lgkmcnt(1)')
    a(f'v_max3_f32 v{V_TMP+2}, v{V_PB}, v{V_PB+1}, v{V_PB+2}')
    a(f'v_max3_f32 v{V_TMP+2}, v{V_TMP+2}, v{V_PB+3}, v{V_MS}')
    a(f'v_sub_f32 v{V_AL}, v{V_MS}, v{V_TMP+2}')
    for i in range(4): a(f'v_sub_f32 v{V_T+i}, v{V_T+i}, v{V_TMP+2}')
    a(f'v_exp_f32 v{V_AL}, v{V_AL}')
    for i in range(4): a(f'v_exp_f32 v{V_T+i}, v{V_T+i}')
    a(f'v_mov_b32 v{V_MS}, v{V_TMP+2}')
    a(f'v_cvt_pk_bf16_f32 v{V_TMP+4}, v{V_T}, v{V_T+1}')
    a(f'v_cvt_pk_bf16_f32 v{V_TMP+5}, v{V_T+2}, v{V_T+3}')
    a(f'ds_write_b64 v{V_PW}, {vr(V_TMP+4,2)} offset:{L_P}')
    a(f'v_add_f32 v{V_T}, v{V_T}, v{V_T+1}')
    a(f'v_add_f32 v{V_T+2}, v{V_T+2}, v{V_T+3}')
    a(f'v_fma_f32 v{V_LS}, v{V_LS}, v{V_AL}, v{V_T}')
    a(f'v_add_f32 v{V_LS}, v{V_LS}, v{V_T+2}')
    a('s_waitcnt lgkmcnt(1)')
    a(f'v_max3_f32 v{V_TMP+2}, v{V_PB+4}, v{V_PB+5}, v{V_PB+6}')
    a(f'v_max3_f32 v{V_TMP+2}, v{V_TMP+2}, v{V_PB+7}, v{V_MP}')
    a(f'v_sub_f32 v{V_AL}, v{V_MP}, v{V_TMP+2}')
    a(f'v_exp_f32 v{V_AL}, v{V_AL}')
    a(f'v_mov_b32 v{V_MP}, v{V_TMP+2}')
    for k in range(32): a(f'v_mul_f32 v{V_ACC+k}, v{V_ACC+k}, v{V_AL}')
    stage(groups[2])
    a('s_waitcnt lgkmcnt(0)\ns_barrier')
    for t in range(4):
        a(f'ds_read_b128 {vr(V_PB+4*t,4)}, v{V_PR} offset:{L_P + 32*t}')
    for t in range(4):
        for cb in range(2):
            f = V_TF + 8*t + 4*cb
            off = t*16*TS + cb*64
            a(f'ds_read_b64_tr_b16 {vr(f,2)}, v{V_TMP+1} offset:{off}')
            a(f'ds_read_b64_tr_b16 {vr(f+2,2)}, v{V_TMP+1} offset:{off + 4*TS}')
    for t in range(4):
        a(f's_waitcnt lgkmcnt({12 - 4*t})')
        for cb in range(2):
            f = V_TF + 8*t + 4*cb
            a(f'v_mfma_f32_32x32x16_bf16 {vr(V_ACC+16*cb,16)}, {vr(f,4)}, {vr(V_PB+4*t,4)}, {vr(V_ACC+16*cb,16)}')
    stage(groups[3])
    a(f's_sub_u32 s{S_BUF}, {BUF}, s{S_BUF}')
    a(f's_add_u32 s{S_IT}, s{S_IT}, 1')
    if cfg.loopst:
        a(f's_add_u32 m0, s{S_IT}, 15')
        stamp(a, cfg, 'm0')
    a(f's_cmp_lt_u32 s{S_IT}, 8\ns_cbranch_scc1 L_C_loop')
    stamp(a, cfg, 4)
    xrow_allreduce(a, 'v_add_f32', V_LS, V_TMP+3)
    a('s_barrier')
    a('s_mov_b64 exec, 0xffff')
    a(f'ds_write_b32 v{V_TW}, v{V_LS} offset:{L_TMAX}')
    a('s_mov_b64 exec, -1')
    RS = 2064
    a(f'v_and_b32 v{V_TMP}, 31, v{V_LANE}')
    a(f'v_mul_u32_u24 v{V_TMP}, {RS}, v{V_TMP}')
    a(f'v_lshrrev_b32 v{V_TMP+1}, 5, v{V_LANE}')
    a(f'v_lshl_add_u32 v{V_TMP}, v{V_TMP+1}, 4, v{V_TMP}')
    a(f's_lshl_b32 s62, s{S_W}, 8\ns_add_u32 s62, s62, {L_T1}')
    a(f'v_add_u32 v{V_TMP}, s62, v{V_TMP}')
    a.nop(6)
    for cb in range(2):
        for k in range(4):
            a(f'ds_write_b128 v{V_TMP}, {vr(V_ACC+16*cb+4*k,4)} offset:{128*cb + 32*k}')
    a('s_waitcnt lgkmcnt(0)\ns_barrier')
    a(f's_mul_i32 s62, s{S_W}, {4*RS}\ns_add_u32 s62, s62, {L_T1}')
    a(f'v_lshl_add_u32 v{V_TMP}, v{V_LANE}, 5, s62')
    for r_ in range(4):
        for hf in range(2):
            a(f'ds_read_b128 {vr(V_SF+8*r_+4*hf,4)}, v{V_TMP} offset:{r_*RS + hf*16}')
    V_RA, V_SA2, V_ST, V_RW = 17, 18, V_PB + 8, V_STG + 16
    a(f'ds_read_b128 {vr(V_PB,4)}, v{V_TRP} offset:{L_TMAX}')
    a(f's_lshl_b32 s62, s{S_B}, 5\ns_lshl_b32 s63, s{S_W}, 2\ns_add_u32 s62, s62, s63')
    a(f's_lshl_b32 s62, s62, 4\ns_and_b32 s63, s{S_H}, 15\ns_add_u32 s62, s62, s63')
    a(f's_lshl_b32 s62, s62, 10\ns_add_u32 s62, s62, {WS_CPART:#x}')
    a(f'v_lshl_add_u32 v{V_RA}, v{V_LANE}, 4, s62')
    a(f's_lshl_b32 s63, s{S_H}, 9\ns_add_u32 s63, s63, {WS_CSTAT:#x}')
    a(f'v_lshl_add_u32 v{V_SA2}, v{V_LANE}, 4, s63')
    a(f'v_mov_b32 v{V_TMP+1}, 0xffff0000')
    a('s_waitcnt lgkmcnt(0)')
    a(f'v_add_f32 v{V_PB}, v{V_PB}, v{V_PB+1}')
    a(f'v_add_f32 v{V_PB+2}, v{V_PB+2}, v{V_PB+3}')
    a(f'v_add_f32 v{V_PB+4}, v{V_PB}, v{V_PB+2}')
    a(f'v_and_or_b32 v{V_ST}, v{V_MP}, v{V_TMP+1}, s{S_TB}')
    a(f'v_lshl_or_b32 v{V_ST+1}, v{V_MP}, 16, s{S_TB+1}')
    a(f'v_and_or_b32 v{V_ST+2}, v{V_PB+4}, v{V_TMP+1}, s{S_TB+2}')
    a(f'v_lshl_or_b32 v{V_ST+3}, v{V_PB+4}, 16, s{S_TB+3}')
    a('s_waitcnt vmcnt(0)\ns_barrier')
    def counter_gate(n, tag, both=False):
        assert cfg.deal == 'glob'
        a(f's_cmp_lg_u32 s{S_W}, 0\ns_cbranch_scc1 L_{tag}_d')
        ctr_addr(V_TMP + 1)
        many = cfg.hany > 1 and not both
        if many:
            assert not cfg.quad
            a(f'v_xor_b32 v{V_TMP+1}, s{S_H}, v{V_LANE}')
            a(f'v_lshlrev_b32 v{V_TMP+1}, 13, v{V_TMP+1}')
            a(f'v_add_u32 v{V_TMP+1}, {WS_OA + 6*1024:#x}, v{V_TMP+1}')
        a(f's_mov_b64 exec, {(1 << cfg.hany) - 1 if many else 3 if cfg.quad and both and not cfg.wgt else 1}')
        if cfg.sig: n = gates(cfg).index(n) + 1
        poll_lanes(a, lambda: a(f'buffer_load_dword v{V_TMP}, v{V_TMP+1}, s[{SRD_WS}:{SRD_WS+3}], 0 offen offset:{1024 if cfg.sig else 0} sc1'),
                   lambda: a(f'v_cmp_gt_i32 vcc, {n - 1}, v{V_TMP}'), cfg.gsleep, tag, any_=many)
        a('s_mov_b64 exec, -1')
        a.label(f'L_{tag}_d')
    def publish():
        if cfg.skipB & 2: return
        stamp(a, cfg, 11)
        for r_ in range(4):
            a(f's_mov_b32 s63, {r_*16384}')
            if not cfg.dg & 1: a(f'buffer_store_dwordx4 {vr(V_RW+4*r_,4)}, v{V_RA}, s[{SRD_WS}:{SRD_WS+3}], s63 offen {cfg.spol.replace("+", " ")}')
        a('s_waitcnt vmcnt(0)\ns_barrier')
        a(f's_cmp_lg_u32 s{S_W}, 0\ns_cbranch_scc1 L_C_nostat')
        a('s_mov_b32 exec_hi, 0')
        a(f'buffer_store_dwordx4 {vr(V_ST,4)}, v{V_SA2}, s[{SRD_WS}:{SRD_WS+3}], 0 offen sc1')
        a('s_mov_b64 exec, -1')
        a.label('L_C_nostat')
        stamp(a, cfg, 5)
    a.label('L_C_tail')
    V_W, V_O, V_B, V_Y, V_FS, V_FY, V_OS = V_Q, V_ACC, V_ACC + 8, V_SF, V_SF + 16, V_PB, V_STG
    V_OA, V_FA, V_FO, V_OW, V_OR, V_YA, V_MK = 9, 10, 11, 12, 13, 14, 15
    S_DRY, S_T1 = 53, 82
    L_O = 0
    a(f'v_add_u32 v{V_STW}, {BUF}, v{V_STA}')
    for i in range(8): a(f'ds_write_b128 v{V_STW}, {vr(V_STG+4*i,4)} offset:{lrow(i)*TS}')
    a(f'v_lshrrev_b32 v{V_TMP}, 2, v{V_C}')
    a(f'v_lshl_add_u32 v{V_TMP}, v{V_G}, 3, v{V_TMP}')
    a(f'v_mul_u32_u24 v{V_TMP}, {TS}, v{V_TMP}')
    a(f'v_and_b32 v{V_TMP+1}, 3, v{V_C}')
    a(f'v_lshl_add_u32 v{V_TMP}, v{V_TMP+1}, 3, v{V_TMP}')
    a(f's_lshl_b32 s62, s{S_W}, 7\ns_add_u32 s62, s62, {L_T0}')
    a(f'v_add_u32 v{V_TMP}, s62, v{V_TMP}')
    a('s_waitcnt lgkmcnt(0)')
    for k in range(16): a(f'v_cvt_pk_bf16_f32 v{V_RW+k}, v{V_SF+2*k}, v{V_SF+2*k+1}')
    if not cfg.hold: publish()
    a('s_barrier')
    for s_ in range(4):
        for t in range(4):
            f = V_W + 16*s_ + 4*t
            a(f'ds_read_b64_tr_b16 {vr(f,2)}, v{V_TMP} offset:{32*t}')
            a(f'ds_read_b64_tr_b16 {vr(f+2,2)}, v{V_TMP} offset:{32*t + 4*TS}')
        a('s_waitcnt lgkmcnt(0)')
        if s_ < 3: a(f'v_add_u32 v{V_TMP}, {32*TS}, v{V_TMP}')
    final_addr(a, V_FA, V_FO, V_TMP + 1, WS_YA, 0)
    a(f'v_and_b32 v{V_OA}, 7, v{V_C}')
    a(f'v_lshlrev_b32 v{V_OA}, {9 if cfg.quad else 10}, v{V_OA}')
    a(f'v_lshrrev_b32 v{V_TMP+1}, 3, v{V_C}')
    a(f'v_mul_u32_u24 v{V_TMP+2}, {4*NA*512 if cfg.quad else 512}, v{V_TMP+1}')
    a(f'v_add_u32 v{V_OA}, v{V_OA}, v{V_TMP+2}')
    a(f'v_lshl_add_u32 v{V_OA}, v{V_G}, 4, v{V_OA}')
    a(f's_lshl_b32 s62, s{S_H}, {15 if cfg.quad else 13}\ns_add_u32 s62, s62, {WS_OA:#x}')
    a(f's_lshl_b32 s63, s{S_W}, 6\ns_add_u32 s63, s63, s62')
    a(f'v_add_u32 v{V_OA}, s63, v{V_OA}')
    a(f'v_mul_u32_u24 v{V_OW}, 272, v{V_TMP+1}')
    a(f'v_lshl_add_u32 v{V_OW}, v{V_G}, 3, v{V_OW}')
    a(f's_lshl_b32 s62, s{S_W}, 5')
    a(f'v_add_u32 v{V_OW}, s62, v{V_OW}')
    a(f'v_and_b32 v{V_TMP+1}, 1, v{V_C}')
    a(f'v_mul_u32_u24 v{V_OR}, 272, v{V_TMP+1}')
    a(f'v_lshl_add_u32 v{V_OR}, v{V_G}, 4, v{V_OR}')
    a(f'v_lshlrev_b32 v{V_YA}, 16, v{V_TMP+1}')
    a(f'v_bfe_u32 v{V_TMP+1}, v{V_C}, 1, 2')
    a(f'v_lshl_add_u32 v{V_YA}, v{V_TMP+1}, 6, v{V_YA}')
    a(f'v_lshl_add_u32 v{V_YA}, v{V_G}, 4, v{V_YA}')
    a(f's_lshl_b32 s62, s{S_H}, 11\ns_lshl_b32 s63, s{S_W}, 8\ns_add_u32 s62, s62, s63\ns_add_u32 s62, s62, {WS_YA:#x}')
    a(f'v_add_u32 v{V_YA}, s62, v{V_YA}')
    for t in range(1, 4):
        m_ = (0x0303 << (2*t)) * 0x00010001
        a(f's_mov_b32 s{S_T1+2*t-2}, {m_:#x}\ns_mov_b32 s{S_T1+2*t-1}, {m_:#x}')
    a(f'v_mov_b32 v{V_MK}, 0xffffff00')
    a('s_mov_b32 s60, 0x0c0c0501\ns_mov_b32 s61, 0x05010c0c')
    stamp(a, cfg, 6)
    a(f's_mov_b32 s{S_DRY}, {SPIN_LIMIT if cfg.dry else 0}')
    if cfg.dry: a('s_branch L_C_merge')
    a.label('L_C_poll')
    a(f'v_mov_b32 v{V_O}, 0\nv_mov_b32 v{V_O+1}, 0\nv_mov_b32 v{V_O+2}, 0x8000\nv_mov_b32 v{V_O+3}, 0xff00')
    m8 = 0xff if cfg.quad else (1 << NA) - 1
    NR = 3 if cfg.quad else 1
    V_O3 = [V_O, V_B, V_B + 4]
    def ld(k=0):
        for j in range(NR): a(f'buffer_load_dwordx4 {vr(V_OS+4*(NR*k+j),4)}, v{V_OA}, s[{SRD_WS}:{SRD_WS+3}], {("0", "s66", "s67")[j]} offen {cfg.lpol.replace("+", " ")}')
    def ck(k=0, behind=None):
        for j in range(NR):
            if behind is not None: a(f's_waitcnt vmcnt({behind + NR - 1 - j})')
            untag(a, V_O3[j], V_TMP, j == 0, src=V_OS + 4*(NR*k+j))
        bad_tags(a, V_TMP)
    if cfg.hold:
        counter_gate(cfg.hold, 'Ch')
        a('s_barrier')
        publish()
    if cfg.gate == 2:
        left = tickets(cfg)
        assert -cfg.gleft <= ((4 if cfg.quad else 8)*NA - max(cfg.G, cfg.Gs)) // (8 if cfg.wgt and not cfg.quad else 1) and cfg.hold <= left
        counter_gate(max(1, left - cfg.gleft), 'Cg', True)
    if cfg.gate == 1:
        a(f's_cmp_lg_u32 s{S_W}, 0\ns_cbranch_scc1 L_C_gd')
        a(f's_mov_b64 exec, {m8}')
        poll_lanes(a, ld, ck, cfg.gsleep, 'Cg', any_=True)
        a.label('L_C_gd')
    a('s_barrier')
    stamp(a, cfg, 7)
    a(f's_mov_b32 exec_lo, {m8 * 0x01010101:#x}\ns_mov_b32 exec_hi, {m8 * 0x01010101:#x}')
    a('s_mov_b32 s64, 0\ns_mov_b32 s66, 0x1000\ns_mov_b32 s67, 0x2000')
    assert NR * cfg.np1 <= 4
    E, M, X = V_O + 4, V_O + 5, V_O
    E3 = [E, V_O + 6, V_O + 7]
    if cfg.quad:
        MK = [70, 72, 74]
        for m_ in MK: a(f's_mov_b64 s[{m_}:{m_+1}], -1')
        a.label('L_C_rp')
        for j in range(3):
            a(f's_mov_b64 exec, s[{MK[j]}:{MK[j]+1}]\ns_cbranch_execz L_C_rl{j}')
            a(f'buffer_load_dwordx4 {vr(V_O3[j],4)}, v{V_OA}, s[{SRD_WS}:{SRD_WS+3}], {("0", "s66", "s67")[j]} offen sc1')
            a.label(f'L_C_rl{j}')
        a('s_add_u32 s64, s64, 1')
        a('s_waitcnt vmcnt(0)')
        for j in range(3):
            a(f's_mov_b64 exec, s[{MK[j]}:{MK[j]+1}]\ns_cbranch_execz L_C_rc{j}')
            untag(a, V_O3[j], V_TMP)
            a(f'v_and_b32 v{V_TMP}, 0xff, v{V_TMP}')
            a(f'v_cmp_ne_u32 s[{MK[j]}:{MK[j]+1}], 0, v{V_TMP}')
            a(f'v_perm_b32 v{E3[j]}, v{V_O3[j]+1}, v{V_O3[j]}, s60')
            a(f'v_perm_b32 v{M}, v{V_O3[j]+3}, v{V_O3[j]+2}, s61')
            a(f'v_or_b32 v{E3[j]}, v{E3[j]}, v{M}')
            a.label(f'L_C_rc{j}')
        a(f's_or_b64 vcc, s[{MK[0]}:{MK[0]+1}], s[{MK[1]}:{MK[1]+1}]')
        a(f's_or_b64 vcc, vcc, s[{MK[2]}:{MK[2]+1}]')
        a('s_cbranch_scc0 L_C_rd')
        if cfg.osleep: a(f's_sleep {cfg.osleep}')
        a(f's_cmp_lt_u32 s64, {SPIN_LIMIT}\ns_cbranch_scc1 L_C_rp')
        a.label('L_C_rd')
    else: poll_sets(a, cfg, cfg.np1, NR, ld, ck, cfg.osleep, 'Co')
    a('s_mov_b64 exec, -1')
    stamp(a, cfg, 8)
    a.label('L_C_merge')
    if cfg.quad:
        a(f'v_max3_f32 v{M}, v{E3[0]}, v{E3[1]}, v{E3[2]}')
        for n, ctl in enumerate(('quad_perm:[1,0,3,2]', 'quad_perm:[2,3,0,1]', 'row_half_mirror')):
            for k in range(4): a(f'v_and_b32 v{V_O3[n]+k}, 0xffff0000, v{V_O3[n]+k}')
            a(f'v_max_f32_dpp v{M}, v{M}, v{M} {ctl} row_mask:0xf bank_mask:0xf')
        for j in range(3): a(f'v_sub_f32 v{E3[j]}, v{E3[j]}, v{M}')
        for j in range(3): a(f'v_exp_f32 v{E3[j]}, v{E3[j]}')
        for k in range(4): a(f'v_mul_f32 v{X+k}, v{X+k}, v{E}')
        for j in (1, 2):
            a(f'v_add_f32 v{E}, v{E}, v{E3[j]}')
            for k in range(4): a(f'v_fmac_f32 v{X+k}, v{V_O3[j]+k}, v{E3[j]}')
    else:
        a(f'v_perm_b32 v{E}, v{V_O+1}, v{V_O}, s60')
        a(f'v_perm_b32 v{M}, v{V_O+3}, v{V_O+2}, s61')
        a(f'v_or_b32 v{E}, v{E}, v{M}')
        for n, ctl in enumerate(('quad_perm:[1,0,3,2]', 'quad_perm:[2,3,0,1]', 'row_half_mirror')):
            if n < 2:
                for k in (2*n, 2*n + 1): a(f'v_and_b32 v{X+k}, 0xffff0000, v{X+k}')
            else: a.nop(2)
            a(f'v_max_f32_dpp v{M}, v{M if n else E}, v{M if n else E} {ctl} row_mask:0xf bank_mask:0xf')
        a(f'v_sub_f32 v{E}, v{E}, v{M}')
        a(f'v_exp_f32 v{E}, v{E}')
        a('s_nop 0')
        for k in range(4): a(f'v_mul_f32 v{X+k}, v{X+k}, v{E}')
    allred8(a, 'v_add_f32', [E, X, X + 1, X + 2, X + 3])
    a(f'v_rcp_f32 v{E}, v{E}')
    a('s_mov_b32 exec_lo, 0x01010101\ns_mov_b32 exec_hi, 0x01010101')
    for k in range(4): a(f'v_mul_f32 v{X+k}, v{X+k}, v{E}')
    a(f'v_cvt_pk_bf16_f32 v{X}, v{X}, v{X+1}')
    a(f'v_cvt_pk_bf16_f32 v{X+1}, v{X+2}, v{X+3}')
    a(f'ds_write_b64 v{V_OW}, {vr(X,2)} offset:{L_O}')
    a('s_mov_b64 exec, -1')
    a('s_waitcnt lgkmcnt(0)\ns_barrier')
    for s_ in range(4): a(f'ds_read_b128 {vr(V_B+4*s_,4)}, v{V_OR} offset:{L_O + 64*s_}')
    for s_ in range(4):
        a(f's_waitcnt lgkmcnt({3-s_})')
        for t in range(4):
            c = '0' if s_ == 0 else vr(V_Y+4*t, 4)
            a(f'v_mfma_f32_16x16x32_bf16 {vr(V_Y+4*t,4)}, {vr(V_W+16*s_+4*t,4)}, {vr(V_B+4*s_,4)}, {c}')
    a(f's_mov_b32 s64, s{S_DRY}')
    a.nop(5)
    for t in range(1, 4):
        for i in range(4): a(f'v_cndmask_b32 v{V_Y+i}, v{V_Y+i}, v{V_Y+4*t+i}, s[{S_T1+2*t-2}:{S_T1+2*t-1}]')
    tag24(a, V_Y, V_MK)
    if cfg.dry: a(f's_cmp_lg_u32 s{S_DRY}, 0\ns_cbranch_scc1 L_C_nost')
    a('s_mov_b32 exec_lo, 0x00ff00ff\ns_mov_b32 exec_hi, 0x00ff00ff')
    a(f'buffer_store_dwordx4 {vr(V_Y,4)}, v{V_YA}, s[{SRD_WS}:{SRD_WS+3}], 0 offen {cfg.rpol.replace("+", " ")}')
    a('s_mov_b64 exec, -1')
    stamp(a, cfg, 9)
    a.label('L_C_nost')
    a(f's_cmp_lg_u32 s{S_W}, 4\ns_cbranch_scc1 L_C_end')
    final_sum(a, cfg, cfg.np2, V_FS, V_FY, V_FA, V_FO, V_TMP, SRD_WS, 'C', cfg.fsleep, (S_DRY, 'L_C_end') if cfg.dry else None)
    stamp(a, cfg, 10)
    a(f's_cmp_lg_u32 s{S_H}, 0\ns_cbranch_scc1 L_C_end')
    a(f'v_mov_b32 v{V_TMP}, {WS_NONCE:#x}\nv_mov_b32 v{V_TMP+1}, s{S_TAG}')
    a('s_mov_b64 exec, 1')
    a(f'buffer_store_dword v{V_TMP+1}, v{V_TMP}, s[{SRD_WS}:{SRD_WS+3}], 0 offen {cfg.npol.replace("plain", "")}'.rstrip())
    a.label('L_C_end')
    if cfg.dry:
        a(f's_cmp_lg_u32 s{S_DRY}, 0\ns_mov_b32 s{S_DRY}, 0\ns_cbranch_scc1 L_C_poll')
    stamp_flush(a, cfg)
    a('s_endpgm')
```

```python
import sys, math, os, struct, re
from asmlib import Asm, vr, sr, lint

NAME = 'concat_heads__gqa_block_cached__compressed_kv_cla__decode'
NA = 6
LDS_BYTES = 154 * 1024
SCALE = (128 ** -0.5) * math.log2(math.e)
def f2u(x): return struct.unpack('<I', struct.pack('<f', x))[0]

WS_QABS  = 0x000000
WS_CSTAT = 0x010000
WS_NONCE = 0x014000
WS_FQ    = 0x015000
WS_QA    = 0x018000
WS_YB    = 0x020000
WS_YA    = 0x040000
WS_OA    = 0x060000
WS_CTR   = 0x180000
WS_CPART = 0x200000
WS_STAMP = 0x800000
GOLDEN   = 0x9E3779B9

P_AX, P_AK, P_AV, P_AWQ, P_AWO, P_BX, P_BC, P_BWQ = 4, 6, 8, 10, 12, 14, 16, 18
P_BWUK, P_BWUV, P_BWO, P_OUT, P_DBG, P_WS = 20, 22, 24, 26, 28, 30
S_H, S_R, S_W = 32, 33, 34
S_M = 68
S_ROT = 69
S_TAG = 58
S_WX = 80
S_TB = 76

SPIN_LIMIT = 1 << 16

DESCRIPTION = """
Generated by gen/gen2.py (hand-written generator).  One launch, 256 workgroups of 8 waves, one per CU.
id -> role from (id >> 3), head from the role and id & 7; ids that are equal modulo 8 are expected behind one L2 (speed only).
role 0..5 (A): first they request the slices that roles 6 and 7 read later, so that these come out of the L2.  Then the
  K/V-cache attention of head h.  A unit is 16 keys per wave.  Most units are fixed: all their K first (scores by v_dot2 +
  DPP row sums, kept in the LDS, with their true maximum per batch), then all their V (P V by MFMA, A = p times a unit
  pattern, B = the V rows as loaded).  The last units are dealt by a counter per head, with the running maximum.
  The workgroup publishes its normalised o with the log-sum-exp.
role 6 (W): q_B = x w_q, q_abs = q_B w_uk^T (absorbed up-projection); later, for head h ^ 7, the merge of the role-7
  partials, w_uv, w_o and the sum over the heads for 32 output columns of part B.
role 7 (C): q = x wq for the A workgroups, then latent attention over 512 keys of c_kv for all 32 heads, last the merge of
  the role-A records of head h, wo[h] and the sum over the heads for 32 output columns of part A.
Hand-offs: sc1 stores and sc1 loads.  Polled data carries a tag derived from a word of the workspace that is changed at
  the end of the launch; q_abs and the role-7 partials are announced by tagged flags.  Every spin is bounded.
"""

class Cfg:
    stamps = False
    span = False
    loopst = False
    same = False
    idmul = 0
    P = 2
    NS = 19
    L0 = 4
    L1 = 4
    L2 = 4
    N1 = 0
    kpol = 'nt'
    vpol = 'nt'
    bpol = 'nt'
    cpol = 'nt'
    wqpol = 'nt'
    wopol = 'nt'
    ppol = 'sc1'
    spol = 'sc1'
    hop = 0
    qpol = 'sc1'
    late = 1
    kat = 1
    wc = False
    rrot = False
    uni = False
    al = 12
    NE = 0
    thr = ''
    thd = 1
    phys = False
    dbgst = False
    rk = ''
    rkt = '12345'
    npol = 'plain'
    lead = False
    trim = True
    rpol = 'sc1'
    lpol = 'sc1'
    opol = ''
    wg1 = False
    vx = 7
    uc = 0
    clate = 0
    skp = ''
    wthr0 = 0
    wthr1 = 0
    wthr = 0
    wthr2 = 0
    cthr = 0
    crot = True
    cblk = True
    psleep = 2
    psleep2 = 0
    deal = 'glob'
    osleep = 0
    fsleep = 0
    gsleep = 2
    gate = 2
    gleft = 16
    hold = 30
    E = 0
    dry = True
    np1 = 1
    np2 = 3
    np3 = 1
    wsleep = 2
    wdry = True
    sig = True
    hany = 1
    stag = 6
    qthr = 0
    cspread = False
    qlds = True
    cilv = False
    wxor = False
    skipB = 0
    xorb = 5
    dg = 0
    rmap = 1
    smap = '01234567'
    gx = True
    rx = 5
    wr = ''
    lay = 0
    col = False
    ahead = False
    quad = False
    rot = -128
    cstep = 0x1100
    sep = True
    pf = 'q3w3k4v4o4c14a4'
    pfpol = ''
    Lp = 4
    tch = ''
    tlag = 0
    pfnt = 0
    wearly = 2
    clu = 0
    wgt = False
    G = 0
    Gs = 0
    adry = -1

LAYOUTS = {
    0: ((1 << 8, 1 << 9), (1 << 10, 1 << 11), ((0, 9, 12),)),
    1: ((1 << 15 | 1 << 8, 1 << 16 | 1 << 9), (1 << 8, 1 << 9), ((0, 3, 12), (3, 2, 10), (5, 4, 17))),
    2: ((1 << 8, 1 << 9), (1 << 15, 1 << 16), ((0, 3, 12), (3, 2, 10), (5, 4, 17))),
    3: ((1 << 15 | 1 << 8, 1 << 9), (1 << 8, 1 << 10), ((0, 3, 12), (3, 1, 11), (4, 5, 16))),
    5: ((1 << 16 | 1 << 9, 1 << 8), (1 << 9, 1 << 10), ((0, 3, 12), (3, 1, 11), (4, 1, 15), (5, 4, 17))),
}
def unit_off(a, cfg, dst, u, hb):
    if cfg.quad:
        if cfg.rot: a(f's_add_u32 s63, s{u}, s{S_ROT}\ns_and_b32 s63, s63, 511')
        else: a(f's_and_b32 s63, s{u}, 511')
        a(f's_lshl_b32 s63, s63, 12\ns_or_b32 s{dst}, s63, s{hb}')
        return
    a(f's_bfe_u32 s63, s{u}, 0x10009\ns_lshl_b32 s63, s63, 26\ns_xor_b32 s{dst}, s63, s{hb}')
    if cfg.rot:
        assert not cfg.lay
        a(f's_{"xor_b32" if cfg.rot < 0 else "add_u32"} s63, s{u}, s{S_ROT}\ns_and_b32 s63, s63, 511\ns_lshl_b32 s63, s63, 12\ns_or_b32 s{dst}, s{dst}, s63')
        return
    for first, cnt, bit in LAYOUTS[cfg.lay][2]:
        a(f's_bfe_u32 s63, s{u}, {(cnt << 16) | first:#x}\ns_lshl_b32 s63, s63, {bit}\ns_or_b32 s{dst}, s{dst}, s63')

def pf_plan(txt):
    return ''.join(k * int(n) for k, n in re.findall(r'([a-z])(\d+)', txt))
def srd(a, d, ptr, off_s=None, nrec=None, nrec_s=None):
    if off_s is None:
        a(f's_mov_b32 s{d}, s{ptr}')
        a(f's_and_b32 s{d+1}, s{ptr+1}, 0xffff')
    else:
        a(f's_add_u32 s{d}, s{ptr}, s{off_s}')
        a(f's_addc_u32 s{d+1}, s{ptr+1}, 0')
        a(f's_and_b32 s{d+1}, s{d+1}, 0xffff')
    if nrec_s is not None: a(f's_mov_b32 s{d+2}, s{nrec_s}')
    else: a(f's_mov_b32 s{d+2}, {nrec:#x}')
    a(f's_mov_b32 s{d+3}, 0x20000')

def stamp(a, cfg, idx):
    if not cfg.stamps: return
    a('s_memrealtime s[90:91]')
    a('s_waitcnt lgkmcnt(0)')
    a(f'v_writelane_b32 v254, s90, {idx}')
def stamp_flush(a, cfg):
    if not cfg.stamps: return
    a(f's_lshl_b32 s92, s2, 3\ns_add_u32 s92, s92, s{S_W}\ns_lshl_b32 s92, s92, 8')
    a(f's_add_u32 s92, s92, {WS_STAMP:#x}')
    a('s_mov_b64 exec, -1')
    a(f'v_lshl_add_u32 v253, v{V_LANE}, 2, s92')
    a(f'global_store_dword v253, v254, s[{P_WS}:{P_WS+1}]')
def span_mark(a, cfg, end):
    if not cfg.span or (cfg.lead and end is True): return
    if not end:
        a('s_memrealtime s[96:97]\ns_getpc_b64 s[98:99]')
        return
    a('s_memrealtime s[90:91]')
    a(f's_lshl_b32 s92, s2, 3\ns_add_u32 s92, s92, {WS_STAMP:#x}')
    a('s_waitcnt lgkmcnt(0)')
    a('s_mov_b64 exec, 1')
    a('v_mov_b32 v252, s96\nv_mov_b32 v253, s90\nv_mov_b32 v250, s92')
    a(f'global_store_dwordx2 v250, v[252:253], s[{P_WS}:{P_WS+1}]')
    a('v_mov_b32 v254, s98\nv_mov_b32 v255, s99')
    a(f'global_store_dwordx2 v250, v[254:255], s[{P_WS}:{P_WS+1}] offset:2048')
    a('s_mov_b64 exec, -1')

V_LANE, V_C, V_G = 1, 2, 3
V_MASK = 4

def lane_ids(a):
    a(f'v_and_b32 v{V_LANE}, 63, v0')
    a(f'v_and_b32 v{V_C}, 15, v0')
    a(f'v_bfe_u32 v{V_G}, v0, 4, 2')
def lane_masks(a, t):
    a(f'v_and_b32 v{t}, 1, v0')
    a(f'v_lshlrev_b32 v{t}, 4, v{t}')
    a(f'v_mov_b32 v{t+1}, 0xffff')
    a(f'v_lshlrev_b32 v{t}, v{t}, v{t+1}')
    a(f'v_bfe_u32 v{t+1}, v0, 1, 2')
    for i in range(4):
        a(f'v_cmp_eq_u32 vcc, {i}, v{t+1}')
        a('s_nop 1')
        a(f'v_cndmask_b32 v{V_MASK+i}, 0, v{t}, vcc')

def load_nonce(a):
    a(f's_load_dword s{S_TAG}, s[{P_WS}:{P_WS+1}], {WS_NONCE:#x}')
def make_tag(a):
    a(f's_add_u32 s{S_TAG}, s{S_TAG}, {GOLDEN:#x}')
    for k in range(4): a(f's_bfe_u32 s{S_TB+k}, s{S_TAG}, {(8 << 16) | 8*k:#x}')
def tag24(a, X, vmask):
    for k in range(4): a(f'v_add_u32 v{X+k}, 0x80, v{X+k}')
    for k in range(4): a(f'v_and_or_b32 v{X+k}, v{X+k}, v{vmask}, s{S_TB+k}')
def untag(a, X, t, first=True, src=None):
    for k in range(4): a(f'v_xor_b32 v{X+k}, s{S_TB+k}, v{(X if src is None else src)+k}')
    if first: a(f'v_or_b32 v{t}, v{X}, v{X+1}')
    else: a(f'v_or3_b32 v{t}, v{t}, v{X}, v{X+1}')
    a(f'v_or3_b32 v{t}, v{t}, v{X+2}, v{X+3}')
def bad_tags(a, t):
    a(f'v_and_b32 v{t}, 0xff, v{t}')
    a(f'v_cmp_ne_u32 vcc, 0, v{t}')

def poll_lanes(a, load, check, sleep, tag, any_=False):
    a('s_mov_b32 s64, 0')
    a.label(f'L_pl_{tag}')
    load()
    a('s_add_u32 s64, s64, 1')
    a('s_waitcnt vmcnt(0)')
    check()
    a('s_nop 0')
    if any_: a(f's_cmp_lg_u64 vcc, exec\ns_cbranch_scc1 L_pd_{tag}')
    else:
        a(f's_cmp_eq_u64 vcc, 0\ns_cbranch_scc1 L_pd_{tag}')
        a('s_mov_b64 exec, vcc')
    if sleep: a(f's_sleep {sleep}')
    a(f's_cmp_lt_u32 s64, {SPIN_LIMIT}\ns_cbranch_scc1 L_pl_{tag}')
    a.label(f'L_pd_{tag}')
def poll_sets(a, cfg, n, per, load, check, sleep, tag):
    for k in range(n):
        if k: a(f's_sleep {cfg.stag}')
        load(k)
    a.label(f'L_ps_{tag}')
    for k in range(n):
        check(k, per * (n - 1))
        a(f's_cmp_eq_u64 vcc, 0\ns_cbranch_scc1 L_pe_{tag}')
        if sleep: a(f's_sleep {sleep}')
        load(k)
    a('s_add_u32 s64, s64, 1')
    a(f's_cmp_lt_u32 s64, {SPIN_LIMIT}\ns_cbranch_scc1 L_ps_{tag}')
    a.label(f'L_pe_{tag}')
def wait_flags(a, cfg, load, check, tag):
    a(f's_cmp_lg_u32 s{S_W}, 0\ns_cbranch_scc1 L_wf_{tag}')
    a(f's_lshl_b64 exec, 1, s{S_H}')
    poll_lanes(a, load, check, cfg.psleep, tag + '1')
    a('s_mov_b32 exec_lo, -1\ns_mov_b32 exec_hi, 0')
    poll_lanes(a, load, check, cfg.psleep2, tag + '2')
    a('s_mov_b64 exec, -1')
    a.label(f'L_wf_{tag}')
    a('s_barrier')

def rowcomb(a, X, Wr, ACC, AOP, TMP, wait_first, after=None):
    for s in range(16):
        sel = '0x01000100' if s % 2 == 0 else '0x03020302'
        t = TMP + (s & 1)
        A = AOP + 4 * (s & 1)
        a(f's_mov_b32 s60, {sel}')
        a(f'v_perm_b32 v{t}, v{X + s//2}, v{X + s//2}, s60')
        for i in range(4):
            a(f'v_and_b32 v{A+i}, v{t}, v{V_MASK+i}')
        n = 15 - s + wait_first + (s if after else 0)
        a(f's_waitcnt vmcnt({min(63, n)})')
        a('s_nop 0')
        c = '0' if s == 0 else vr(ACC, 4)
        a(f'v_mfma_f32_16x16x32_bf16 {vr(ACC,4)}, {vr(A,4)}, {vr(Wr+4*s,4)}, {c}')
        if after: after(s)

def xrow_allreduce(a, op, x, tmp, steps=(16, 32)):
    for st in steps:
        a(f'v_mov_b32 v{tmp}, v{x}')
        a.nop(2)
        a(f'v_permlane{st}_swap_b32 v{x}, v{tmp}')
        a.nop(1)
        a(f'{op} v{x}, v{x}, v{tmp}')

def allred8(a, op, xs):
    for ctl in ('quad_perm:[1,0,3,2]', 'quad_perm:[2,3,0,1]', 'row_half_mirror'):
        a.nop(max(0, 3 - len(xs)))
        for x in xs:
            a(f'{op}_dpp v{x}, v{x}, v{x} {ctl} row_mask:0xf bank_mask:0xf')

V_XA = 250
def row_load(a, srd_, voff, dst, pol, s_):
    if CFG.clu & 2:
        a(f'v_xor_b32 v{V_XA + (s_ & 1)}, {s_*8192:#x}, v{voff}')
        a(f'buffer_load_dwordx4 {vr(dst,4)}, v{V_XA + (s_ & 1)}, s[{srd_}:{srd_+3}], 0 offen {pol}')
    else:
        a(f's_xor_b32 s62, s{S_WX}, {s_*8192}')
        a(f'buffer_load_dwordx4 {vr(dst,4)}, v{voff}, s[{srd_}:{srd_+3}], s62 offen {pol}')
def g_bits(a, v, t, m0, m1):
    for k, m in ((4, m0), (5, m1)):
        a(f'v_bfe_i32 v{t}, v0, {k}, 1')
        a(f'v_and_b32 v{t}, {m:#x}, v{t}')
        a(f'v_xor_b32 v{v}, v{v}, v{t}')
def slice_loads(a, srd_, voff, dst, pol, kind, thr=0):
    if kind == 'rows':
        for s_ in range(16):
            if thr: a(f's_waitcnt vmcnt({thr-1})')
            row_load(a, srd_, voff, dst + 4*s_, pol, s_)
    else:
        for s_ in range(4):
            for cb in range(4):
                if thr: a(f's_waitcnt vmcnt({thr-1})')
                if CFG.clu & 4:
                    a(f'v_xor_b32 v{V_XA + (cb & 1)}, {cb*256}, v{voff}')
                    a(f'buffer_load_dwordx4 {vr(dst+16*s_+4*cb,4)}, v{V_XA + (cb & 1)}, s[{srd_}:{srd_+3}], 0 offen offset:{s_*1024} {pol}')
                else: a(f'buffer_load_dwordx4 {vr(dst+16*s_+4*cb,4)}, v{voff}, s[{srd_}:{srd_+3}], 0 offen offset:{s_*1024+cb*256} {pol}')

def rows_voff(a, v):
    if CFG.clu & 2:
        a(f's_and_b32 s62, s{S_W}, 3\ns_lshl_b32 s62, s62, 17\ns_lshr_b32 s63, s{S_W}, 2\ns_lshl_b32 s63, s63, 20\ns_or_b32 s62, s62, s63')
        a(f'v_lshl_add_u32 v{v}, v{V_C}, 4, s62')
        g_bits(a, v, V_XA, 1 << 13 | 1 << 16 | 1 << 21, 1 << 14 | 1 << 17 | 1 << 19)
        return
    a(f'v_lshlrev_b32 v{v}, 17, v{V_G}')
    a(f'v_lshl_add_u32 v{v}, v{V_C}, 4, v{v}')
    a(f's_lshl_b32 s62, s{S_W}, 19')
    a(f'v_add_u32 v{v}, s62, v{v}')
def wo_voff(a, v):
    if CFG.clu & 4:
        a(f's_lshl_b32 s62, s{S_W}, 12')
        a(f'v_lshl_add_u32 v{v}, v{V_C}, 4, s62')
        g_bits(a, v, V_XA, 1 << 15 | 1 << 8, 1 << 16 | 1 << 9)
        return
    a(f'v_lshlrev_b32 v{v}, 12, v{V_G}')
    a(f'v_lshl_add_u32 v{v}, v{V_C}, 4, v{v}')
    a(f's_lshl_b32 s62, s{S_W}, 14')
    a(f'v_add_u32 v{v}, s62, v{v}')
def x_loads(a, srd_, X, tmp):
    a(f'v_lshrrev_b32 v{tmp}, 3, v{V_C}')
    a(f'v_lshlrev_b32 v{tmp}, 10, v{tmp}')
    a(f'v_lshl_add_u32 v{tmp}, v{V_G}, 5, v{tmp}')
    a(f's_lshl_b32 s62, s{S_W}, 7')
    a(f'v_add_u32 v{tmp}, s62, v{tmp}')
    if CFG.wxor:
        a(f's_and_b32 s{S_WX}, s{S_H}, 3\ns_lshl_b32 s63, s{S_WX}, 3\ns_lshl_b32 s{S_WX}, s{S_WX}, 15')
        for k in range(4):
            a(f's_xor_b32 s62, s63, {8*k}')
            a(f'buffer_load_dwordx2 {vr(X+2*k,2)}, v{tmp}, s[{srd_}:{srd_+3}], s62 offen')
        return
    a(f's_mov_b32 s{S_WX}, 0')
    a(f'buffer_load_dwordx4 {vr(X,4)}, v{tmp}, s[{srd_}:{srd_+3}], 0 offen')
    a(f'buffer_load_dwordx4 {vr(X+4,4)}, v{tmp}, s[{srd_}:{srd_+3}], 0 offen offset:16')

def dtile_addr(a, tmp, wstride_sh, bstride_sh):
    a(f'v_lshrrev_b32 v{tmp}, 1, v{V_G}')
    a(f'v_lshlrev_b32 v{tmp}, {bstride_sh}, v{tmp}')
    a(f'v_lshl_add_u32 v{tmp}, v{V_C}, 5, v{tmp}')
    a(f'v_and_b32 v{tmp+1}, 1, v{V_G}')
    a(f'v_lshl_add_u32 v{tmp}, v{tmp+1}, 4, v{tmp}')
    a(f's_lshl_b32 s63, s{S_W}, {wstride_sh}')
    a(f'v_add_u32 v{tmp}, s63, v{tmp}')
def dtile_to_lds(a, D, tmp, base, wstride_sh, bstride_sh, ncb):
    dtile_addr(a, tmp, wstride_sh, bstride_sh)
    if base > 60000:
        a(f'v_add_u32 v{tmp}, {base}, v{tmp}'); base = 0
    a.nop(2)
    for cb in range(ncb):
        if cb == ncb - 1: a.nop(6)
        a(f'ds_write_b128 v{tmp}, {vr(D+4*cb,4)} offset:{base + 512*cb}')

def q_reduce(a, D, tmp, L_QP, L_QB, tag):
    dtile_to_lds(a, D, tmp, L_QP, 10, 9, 1)
    a('s_waitcnt lgkmcnt(0)\ns_barrier')
    a(f's_cmp_ge_u32 s{S_W}, 4\ns_cbranch_scc1 L_{tag}_qskip')
    a(f'v_lshlrev_b32 v{tmp+2}, 2, v0')
    for w in range(8):
        a(f'ds_read_b32 v{tmp+4+w}, v{tmp+2} offset:{L_QP + 1024*w}')
    a('s_waitcnt lgkmcnt(0)')
    for w in range(1, 8):
        a(f'v_add_f32 v{tmp+4}, v{tmp+4}, v{tmp+4+w}')
    a(f'v_cvt_pk_bf16_f32 v{tmp+4}, v{tmp+4}, v{tmp+4}')
    a(f'v_lshlrev_b32 v{tmp+2}, 1, v0')
    a(f'ds_write_b16 v{tmp+2}, v{tmp+4} offset:{L_QB}')
    a('s_waitcnt lgkmcnt(0)')
    a.label(f'L_{tag}_qskip')
    a('s_barrier')

def args_wait(a, cfg):
    if cfg.stamps: a('s_memrealtime s[98:99]')
    a('s_waitcnt lgkmcnt(0)')
    if cfg.stamps: a('s_memrealtime s[94:95]')

def role_A(a, cfg, first_unit):
    P, NS = cfg.P, cfg.NS
    NT = 512 if cfg.quad else 1024
    PER = 4 * NA if cfg.quad else 8 * NA
    POOL = NS * PER + cfg.E * PER // 2
    OS = 1056
    L_O, L_S = 0, 8 * OS
    L_CT = L_S + 128
    lds = cfg.deal == 'lds'
    NW = NT // PER
    TD = 8 * (NW - NS)
    SRD_K, SRD_V, S_CTR = 40, 44, 52
    S_CUR, S_NXT, S_OC, S_ON, S_GR, S_IT, S_HB, S_PH, S_PW, S_PX, S_DL, S_DRY = 35, 36, 37, 38, 39, 54, 55, 56, 57, 59, 66, 67
    M0 = 0xff7fffff
    V_L16 = 8
    V_Q, V_Q2 = 12, 16
    V_R = 20
    V_X = V_R + 32
    V_T = V_X + 32 * P
    V_A = V_T + 4
    V_ACC = V_A + 16
    V_M, V_L, V_AL, V_MN, V_SC, V_XX, V_P0, V_P1 = [V_ACC + 4 + k for k in range(8)]
    V_PL = V_A
    V_TMP = V_A + 12
    V_OA, V_SA, V_MA, V_QA, V_CA, V_ONE, V_GA = [V_ACC + 12 + k for k in range(7)]
    assert V_GA < 250 and V_M % 2 == 0 and (2*P - 1) * PER <= 512 and NS >= 2 * P and POOL <= NT
    sep = cfg.sep
    V_T2, V_QC = V_ACC + 20, V_ACC + 24 if sep else V_Q
    V_SP, V_SB, V_M0, V_MC = [V_ACC + 28 + k for k in range(4)]
    S_OV, S_C2, S_U0, S_KB, S_VB, S_EX = 48, 49, 50, 70, 72, 74
    L_SC = L_CT + 256
    NE = cfg.NE or NS & ~1
    NK = NE // 2 - P
    if sep: assert NK >= P and 2*P*PER <= 512 and NE*PER >= 512 + PER and POOL < NT and V_MC < 250
    if sep: assert not (cfg.quad or lds or cfg.col or cfg.E or cfg.ahead or cfg.lay) and max(cfg.L0, cfg.L1, cfg.L2) <= 4
    L0, L1, L2, N1 = cfg.L0, cfg.L1, cfg.L2, cfg.N1
    a.label('L_roleA')
    def slots():
        if not (cfg.wgt or cfg.wg1): return
        assert not lds and not cfg.col and not cfg.E and not cfg.ahead and not (cfg.wgt and (cfg.Gs or cfg.wg1)) and V_CA >= 144
        a(f'v_lshlrev_b32 v{V_CA}, 2, v{V_LANE}\nv_mov_b32 v{V_ONE}, -1')
        a(f'ds_write_b32 v{V_CA}, v{V_ONE} offset:{L_CT}')
        a('s_waitcnt lgkmcnt(0)\ns_barrier')
        a(f'v_mov_b32 v{V_CA}, {L_CT}')
    if cfg.late == 2: slots()
    def k_srd():
        a(f's_lshl_b32 s62, s{S_H}, 21')
        srd(a, SRD_K, P_AK, off_s=62, nrec=66 << 20)
    if not cfg.late: k_srd()
    assert cfg.pf or not cfg.late
    def load(dst, slot, so):
        isv, i = slot >= 4, slot % 4
        s_ = SRD_V if isv else SRD_K
        if cfg.lay: a(f'buffer_load_dwordx4 {vr(dst+4*slot,4)}, v{V_L16 + i}, s[{s_}:{s_+3}], s{so} offen {cfg.vpol if isv else cfg.kpol}')
        else: a(f'buffer_load_dwordx4 {vr(dst+4*slot,4)}, v{V_L16}, s[{s_}:{s_+3}], s{so} offen offset:{1024*i} {cfg.vpol if isv else cfg.kpol}')
    ops = []
    Lr = L1 if N1 > 0 else L2
    def slow_round(j):
        m = int(cfg.thr[2*j:2*j + 2] or '0', 16)
        if m: a(('s_getreg_b32 s63, hwreg(20, 0, 3)' if cfg.phys else 's_and_b32 s63, s2, 7') + f'\ns_bitcmp1_b32 {m}, s63\ns_cselect_b64 vcc, -1, 0')
        return m
    def pre(n):
        u, slot = divmod(n, 8)
        if n % 4 == 0: pre.slow = n < 8 * P and slow_round(len(pf_plan(cfg.pf)) // NA + n // 4)
        if n >= L0:
            a(f's_waitcnt vmcnt({len(ops) - 1 - ops.index(n - L0)})')
        if pre.slow: a(f's_cbranch_vccz L_A_pre{n}\ns_waitcnt vmcnt({L0 - 1 - cfg.thd})\nL_A_pre{n}:')
        if cfg.loopst and n >= L0 and (n - L0) % 8 == 3: stamp(a, cfg, 16 + (n - L0) // 8)
        if slot % (4 if sep else 8) == 0 and n:
            a(f's_add_u32 s{S_CUR}, s{S_CUR}, {PER}')
            unit_off(a, cfg, S_OC, S_CUR, S_HB)
        load(V_X + 32 * u if u < P else V_R, slot, S_OC)
        ops.append(n)
    if cfg.pf:
        plan = pf_plan(cfg.pf)
        assert len(plan) % NA == 0 and not cfg.quad and cfg.crot and not cfg.cilv
        assert cfg.rx and not cfg.same
        SRD_P, S_PO, S_PS, S_PG, S_HW, S_HC = 84, 88, 89, 81, 82, 83
        V_PA, V_C16 = 9, 11
        if cfg.late < 2:
            a(f's_mov_b32 s{SRD_P+3}, 0x20000')
            a(f's_andn2_b32 s60, s{S_H}, 7\ns_and_b32 s61, s2, 7\ns_or_b32 s{S_HW}, s60, s61')
            if cfg.gx: a(f's_lshr_b32 s60, s2, 6\ns_xor_b32 s{S_HW}, s{S_HW}, s60')
        a(f's_xor_b32 s{S_HC}, s{S_HW}, {cfg.rx}')
        if cfg.late < 2: a(f'v_lshlrev_b32 v{V_C16}, 4, v{V_C}')
        nld = 0; pops = []
        V_TA = V_Q
        if cfg.tch:
            a(f'v_lshrrev_b32 v{V_TA + 2}, 1, v{V_LANE}')
            a(f'v_and_b32 v{V_TA + 3}, 1, v{V_LANE}')
            a(f'v_lshlrev_b32 v{V_TA + 3}, 7, v{V_TA + 3}')
        for j in range(len(plan) // NA):
            row = plan[NA*j:NA*j + NA]
            if cfg.late == 2 and j == cfg.kat + 1:
                first_unit()
                k_srd()
            if cfg.late == 2 and j == 0:
                assert V_R == 20
                nld = 4; pops = [0, 1, 2, 3]
                stamp(a, cfg, 0)
                continue
            defer = [] if cfg.late and j == 0 else None
            skip = int(cfg.skp[2*j:2*j + 2] or '0', 16)
            if skip: a(f's_and_b32 s63, s2, 7\ns_bitcmp1_b32 {skip}, s63\ns_cbranch_scc1 L_A_skip{j}')
            for n_, k in enumerate(sorted(set(row), key=row.index)):
                r0 = row.index(k)
                assert row.count(k) == row.rindex(k) - r0 + 1
                first = plan[:NA*j + r0].count(k) + (16 if k == 'c' else 4) - plan.count(k)
                ptr, hr, hs, gs, size = {'k': (P_BWUK, S_HW, 8, 13, 4), 'c': (P_BC, S_HC, 19, 8, 16), 'v': (P_BWUV, S_HW, 8, 13, 4),
                                         'o': (P_BWO, S_HW, 17, 8, 4), 'a': (P_AWO, S_HC, 17, 8, 4),
                                         'q': (P_AWQ, S_HC, 8, 13, 4), 'w': (P_BWQ, S_HW, 8, 13, 4)}[k]
                a(f's_add_u32 s60, s{S_R}, {first - r0 & 0xffffffff:#x}\ns_lshl3_add_u32 s60, s60, s{S_W}\ns_lshl_b32 s60, s60, {gs + 4}')
                if k == 'c': a(f's_and_b32 s61, s{hr}, 3\ns_lshl_b32 s61, s61, 17\ns_xor_b32 s60, s60, s61')
                if cfg.vx and k in 'vo':
                    a(f's_xor_b32 s61, s{hr}, {cfg.vx}')
                    hr = 61
                a(f's_lshl_b32 s61, s{hr}, {hs}\ns_add_u32 s60, s60, s61')
                if defer is not None: defer.append(ptr)
                if n_ == 0:
                    if defer is None: a(f's_mov_b64 s[{SRD_P}:{SRD_P+1}], s[{ptr}:{ptr+1}]')
                    a(f's_mov_b32 s{SRD_P+2}, {size << 20:#x}\ns_mov_b32 s{S_PO}, s60\ns_mov_b32 s{S_PG}, {gs}')
                else:
                    a(f's_cmp_ge_u32 s{S_R}, {r0}')
                    if defer is None: a(f's_cselect_b64 s[{SRD_P}:{SRD_P+1}], s[{ptr}:{ptr+1}], s[{SRD_P}:{SRD_P+1}]')
                    a(f's_cselect_b32 s{SRD_P+2}, {size << 20:#x}, s{SRD_P+2}\ns_cselect_b32 s{S_PO}, s60, s{S_PO}\ns_cselect_b32 s{S_PG}, {gs}, s{S_PG}')
            if defer is None: a(f's_and_b32 s{SRD_P+1}, s{SRD_P+1}, 0xffff')
            a(f's_lshl_b32 s{S_PS}, 4, s{S_PG}')
            a(f'v_lshl_add_u32 v{V_PA + (j & 1)}, v{V_G}, s{S_PG}, v{V_C16}')
            if defer:
                assert len(defer) <= 2 and not cfg.tch
                for i in range(1, 4): a(f's_add_u32 s{59 + i}, s{S_PO if i == 1 else 58 + i}, s{S_PS}')
                a(f's_cmp_ge_u32 s{S_R}, {row.index(row[-1])}')
                args_wait(a, cfg)
                a(f's_cselect_b64 s[{SRD_P}:{SRD_P+1}], s[{defer[-1]}:{defer[-1]+1}], s[{defer[0]}:{defer[0]+1}]')
                a(f's_and_b32 s{SRD_P+1}, s{SRD_P+1}, 0xffff')
            if cfg.tch:
                a(f'v_lshl_add_u32 v{V_TA + (j & 1)}, v{V_TA + 2}, s{S_PG}, v{V_TA + 3}')
                a(f'v_add_u32 v{V_TA + (j & 1)}, s{S_PO}, v{V_TA + (j & 1)}')
            if cfg.stamps and j == 0: a('s_memrealtime s[100:101]')
            if j in (1, 2, 3, 4): stamp(a, cfg, 11 + j)
            slow = slow_round(j)
            for i in range(4):
                if nld >= cfg.Lp: a(f's_waitcnt vmcnt({len(pops) - 1 - pops.index(nld - cfg.Lp)})')
                if slow: a(f's_cbranch_vccz L_A_pf{nld}\ns_waitcnt vmcnt({cfg.Lp - 1 - cfg.thd})\nL_A_pf{nld}:')
                a(f'buffer_load_dwordx4 {vr(V_R + 4*i, 4)}, v{V_PA + (j & 1)}, s[{SRD_P}:{SRD_P+3}], s{59 + i if defer and i else S_PO} offen {"nt" if j < cfg.pfnt else cfg.pfpol.replace("+", " ")}')
                if i < 3 and not defer: a(f's_add_u32 s{S_PO}, s{S_PO}, s{S_PS}')
                pops.append(nld); nld += 1
                if nld == cfg.Lp: stamp(a, cfg, 0)
                if cfg.tch and (i == 3 or cfg.tlag == 0):
                    a(f's_mov_b64 exec, {0xff << 8*i if cfg.tlag == 0 else 0xffffffff:#x}')
                    a(f'buffer_load_dword v{V_R + 16}, v{V_TA + (j & 1)}, s[{SRD_P}:{SRD_P+3}], 0 offen {cfg.tch.replace("+", " ").replace("plain", "")}')
                    a('s_mov_b64 exec, -1')
                    pops.append('t')
            if skip: a.label(f'L_A_skip{j}')
            if defer:
                first_unit()
                k_srd()
        stamp(a, cfg, 7)
        if cfg.stamps:
            for n, r in enumerate((96, 98, 94, 100)): a(f'v_writelane_b32 v254, s{r}, {8 + n}')
    for n in range(min(L0, 4)):
        if cfg.pf: a(f's_waitcnt vmcnt({L0 - 1})')
        pre(n)
    if not cfg.pf: stamp(a, cfg, 0)
    srd(a, SRD_V, P_AV, off_s=62, nrec=66 << 20)
    if sep:
        a(f's_mov_b64 s[{S_KB}:{S_KB+1}], s[{SRD_K}:{SRD_K+1}]\ns_mov_b64 s[{S_VB}:{S_VB+1}], s[{SRD_V}:{SRD_V+1}]')
        a(f's_mov_b64 s[{SRD_V}:{SRD_V+1}], s[{SRD_K}:{SRD_K+1}]')
        a(f's_mov_b32 s{S_U0}, s{S_CUR}\ns_mov_b32 s{S_EX}, 0x00010001\ns_mov_b32 s{S_EX+1}, 0x00010001')
        a(f's_mul_i32 s63, s{S_W}, {64*NS}\ns_add_u32 s63, s63, {L_SC}')
        a(f'v_lshl_add_u32 v{V_SB}, v{V_G}, 4, s63')
        a(f'v_add_u32 v{V_SP}, {128*P}, v{V_SB}')
        a(f'v_mov_b32 v{V_M0}, {M0:#x}\nv_mov_b32 v{V_MC}, {M0:#x}')
    for n in range(min(L0, 4), L0): pre(n)
    if lds:
        a(f'v_mov_b32 v{V_CA}, {L_CT}\nv_mov_b32 v{V_ONE}, 0')
        a(f'ds_write_b32 v{V_CA}, v{V_ONE}')
        a(f's_lshl_b32 s{S_PW}, s{S_R}, 3\ns_add_u32 s{S_PW}, s{S_PW}, {POOL}')
        a(f's_add_u32 s{S_PX}, s{S_R}, {NW*PER - NA*TD}')
    if cfg.late < 2: slots()
    RK = [int(t) for t in cfg.rk.split(',')] if cfg.rk else []
    S_TH, S_RK = 51, 68
    if RK:
        assert sep and not (cfg.wgt or cfg.wg1 or lds) and len(RK) <= 4 and all(P <= t < NE - P - 2 and t not in (NK - 1,) for t in RK)
        a(f'v_lshlrev_b32 v{V_CA}, 2, v{V_LANE}\nv_mov_b32 v{V_ONE}, -1')
        a(f'ds_write_b32 v{V_CA}, v{V_ONE} offset:{L_CT}')
        a(f'v_mov_b32 v{V_CA}, 0\ns_mov_b32 s{S_TH}, 0')
    lane_masks(a, V_TMP)
    if lds:
        a('s_waitcnt lgkmcnt(0)\ns_barrier')
        a(f'v_mov_b32 v{V_ONE}, 1')
    load_nonce(a)
    if cfg.quad:
        assert not lds and not cfg.col and not cfg.E and not cfg.lay
        a(f's_lshr_b32 s62, s{S_HB}, 26\ns_lshl1_add_u32 s62, s{S_H}, s62\ns_mul_i32 s62, s62, {cfg.cstep:#x}\ns_add_u32 s62, s62, {WS_CTR:#x}')
    else: a(f's_lshl_b32 s62, s{S_H}, 13\ns_add_u32 s62, s62, {WS_OA + 6*1024:#x}')
    a(f's_mov_b32 s{S_DL}, {NS - 1 - P}')
    if cfg.E:
        assert not lds and not cfg.col and not cfg.ahead and not cfg.same
        a(f's_bitcmp0_b32 s2, 0\ns_cselect_b32 s{S_DL}, {NS - 1 - P + cfg.E}, s{S_DL}')
        a(f's_lshr_b32 s{S_PX}, s{S_R}, 1\ns_lshl3_add_u32 s{S_PX}, s{S_PX}, s{S_W}\ns_add_u32 s{S_PX}, s{S_PX}, {NS * PER}')
    if cfg.wgt: a(f's_add_u32 s{S_PW}, s{S_W}, {POOL}\ns_cmp_eq_u32 s{S_W}, 0\ns_cselect_b32 s{S_DL}, s{S_DL}, -1')
    if cfg.col: a(f's_lshl_b32 s63, s{S_W}, 7\ns_add_u32 s62, s62, s63\ns_add_u32 s{S_PW}, s{S_W}, {POOL}')
    a(f's_add_u32 s{S_CTR}, s{P_WS}, s62\ns_addc_u32 s{S_CTR+1}, s{P_WS+1}, 0')
    def acc_init():
        a(f'v_mov_b32 v{V_M}, {M0:#x}')
        a(f'v_mov_b32 v{V_L}, 0')
        for k in range(4): a(f'v_mov_b32 v{V_ACC+k}, 0')
    acc_init()
    a(f'v_mov_b32 v{V_SC}, {f2u(SCALE):#x}')
    a(f's_mov_b32 s{S_PH}, 0\ns_mov_b32 s{S_IT}, 0')
    a(f's_lshr_b32 s61, s{S_HB}, 17')
    a(f'v_lshrrev_b32 v{V_QA}, 1, v{V_G}')
    a(f'v_lshlrev_b32 v{V_QA}, 9, v{V_QA}')
    a(f'v_xor_b32 v{V_QA}, s61, v{V_QA}')
    a(f'v_lshl_add_u32 v{V_QA}, v{V_C}, 5, v{V_QA}')
    a(f'v_and_b32 v{V_TMP}, 1, v{V_G}')
    a(f'v_lshl_add_u32 v{V_QA}, v{V_TMP}, 4, v{V_QA}')
    a(f's_lshl_b32 s62, s{S_H}, 10\ns_add_u32 s62, s62, {WS_QA:#x}')
    a(f'v_add_u32 v{V_QA}, s62, v{V_QA}')
    if cfg.quad:
        a(f'v_lshlrev_b32 v{V_GA}, 5, v{V_C}')
        a(f'v_lshl_add_u32 v{V_GA}, v{V_G}, 4, v{V_GA}')
        a(f's_lshr_b32 s62, s{S_HB}, 26\ns_mul_i32 s62, s62, {PER}\ns_add_u32 s62, s62, s{S_M}\ns_lshl_b32 s62, s62, 9')
        a(f's_lshl_b32 s63, s{S_H}, 15\ns_add_u32 s62, s62, s63\ns_add_u32 s62, s62, {WS_OA:#x}')
        a(f'v_add_u32 v{V_GA}, s62, v{V_GA}')
    else:
        a(f'v_lshlrev_b32 v{V_OA}, 5, v{V_C}')
        a(f'v_lshl_add_u32 v{V_OA}, v{V_G}, 4, v{V_OA}')
        a(f's_mul_i32 s62, s{S_W}, {OS}')
        a(f'v_add_u32 v{V_OA}, s62, v{V_OA}')
        a(f's_lshl_b32 s62, s{S_W}, 3')
        a(f'v_mov_b32 v{V_SA}, s62')
        a(f'v_and_b32 v{V_TMP}, 7, v{V_LANE}')
        a(f'v_lshrrev_b32 v{V_TMP+1}, 3, v{V_LANE}')
        a(f'v_add_u32 v{V_TMP+1}, s62, v{V_TMP+1}')
        a(f'v_lshlrev_b32 v{V_TMP+1}, 4, v{V_TMP+1}')
        a(f'v_mul_u32_u24 v{V_MA}, {OS}, v{V_TMP}')
        a(f'v_add_u32 v{V_MA}, v{V_MA}, v{V_TMP+1}')
        a(f'v_xor_b32 v{V_GA}, s61, v{V_TMP+1}')
        a(f's_lshl_b32 s62, s{S_H}, 3\ns_add_u32 s62, s62, s{S_R}\ns_lshl_b32 s62, s62, 10\ns_add_u32 s62, s62, {WS_OA:#x}')
        a(f'v_add_u32 v{V_GA}, s62, v{V_GA}')
    if cfg.adry >= 0:
        a(f's_cmp_eq_u32 s{S_W}, {cfg.adry}\ns_cselect_b32 s{S_DRY}, 1, 0\ns_cbranch_scc1 L_A_dry')
        a.label('L_A_dryd')
    for n in range(L0, 8 * P): pre(n)
    a(f'global_load_dwordx4 {vr(V_PL,4)}, v{V_QA}, s[{P_WS}:{P_WS+1}] {cfg.qpol.replace("plain", "")}'); ops.append('q')
    for n in range(8 * P, 8 * P + Lr): pre(n)
    stamp(a, cfg, 1)
    a('s_waitcnt lgkmcnt(0)')
    make_tag(a)
    a('s_mov_b32 s64, 0\ns_mov_b32 s60, 0x05040100\ns_mov_b32 s61, 0x07060302')
    a(f's_waitcnt vmcnt({Lr})')
    a.label('L_A_qchk')
    a(f'v_perm_b32 v{V_TMP}, v{V_PL+1}, v{V_PL}, s60')
    a(f'v_perm_b32 v{V_TMP+1}, v{V_PL+3}, v{V_PL+2}, s60')
    a(f'v_xor_b32 v{V_TMP}, s{S_TAG}, v{V_TMP}')
    a(f'v_xor_b32 v{V_TMP+1}, s{S_TAG}, v{V_TMP+1}')
    a(f'v_or_b32 v{V_TMP}, v{V_TMP}, v{V_TMP+1}')
    a(f'v_cmp_ne_u32 vcc, 0, v{V_TMP}')
    a('s_add_u32 s64, s64, 1')
    a('s_cmp_eq_u64 vcc, 0\ns_cbranch_scc1 L_A_qok')
    a(f's_cmp_ge_u32 s64, {SPIN_LIMIT}\ns_cbranch_scc1 L_A_qok')
    a(f'global_load_dwordx4 {vr(V_PL,4)}, v{V_QA}, s[{P_WS}:{P_WS+1}] sc1')
    a('s_waitcnt vmcnt(0)')
    a('s_branch L_A_qchk')
    a.label('L_A_qok')
    a(f'v_perm_b32 v{V_TMP}, v{V_PL+1}, v{V_PL}, s61')
    a(f'v_perm_b32 v{V_TMP+1}, v{V_PL+3}, v{V_PL+2}, s61')
    a(f'v_lshlrev_b32 v{V_TMP+2}, 2, v{V_C}')
    for row in range(4):
        for k in range(2):
            a(f'ds_bpermute_b32 v{V_Q + 2*row + k}, v{V_TMP+2}, v{V_TMP+k} offset:{64*row}')
    a('s_waitcnt lgkmcnt(0)')
    if sep:
        for k in range(4): a(f'v_mov_b32 v{V_QC+k}, v{V_Q+k}')
    stamp(a, cfg, 2)

    tails = []
    def score(i, K, T=V_T, Q=V_QC):
        a(f'v_dot2_f32_bf16 v{T+i}, v{K}, v{Q}, 0')
        for k in range(1, 4):
            a(f'v_dot2_f32_bf16 v{T+i}, v{K+k}, v{Q+k}, v{T+i}')
    def rowsum(idx, T=V_T):
        a.nop(3 if len(idx) == 1 else 2)
        for st in (8, 4, 2, 1):
            for i in idx:
                a(f'v_add_f32_dpp v{T+i}, v{T+i}, v{T+i} row_ror:{st} row_mask:0xf bank_mask:0xf')
            if st != 1: a.nop(max(0, 3 - len(idx)))
        for i in idx: a(f'v_mul_f32 v{T+i}, v{T+i}, v{V_SC}')
    def keep(T, adr, off, M):
        a(f's_mov_b64 exec, s[{S_EX}:{S_EX+1}]')
        a(f'ds_write_b128 v{adr}, {vr(T,4)} offset:{off}')
        a('s_mov_b64 exec, -1')
        a(f'v_max3_f32 v{M}, v{M}, v{T}, v{T+1}')
        a(f'v_max3_f32 v{M}, v{M}, v{T+2}, v{T+3}')
    def soft(tag):
        a(f'v_max3_f32 v{V_XX}, v{V_T}, v{V_T+1}, v{V_T+2}')
        a(f'v_max_f32 v{V_XX}, v{V_XX}, v{V_T+3}')
        a(f'v_cmp_gt_f32 vcc, v{V_XX}, v{V_M}')
        a('s_nop 0')
        a(f's_cmp_lg_u64 vcc, 0\ns_cbranch_scc1 L_A_max{tag}')
        a.label(f'L_A_maxd{tag}')
        for i in range(4): a(f'v_sub_f32 v{V_T+i}, v{V_T+i}, v{V_M}')
        for i in range(4): a(f'v_exp_f32 v{V_T+i}, v{V_T+i}')
        def upd():
            a.label(f'L_A_max{tag}')
            a(f'v_max_f32_dpp v{V_XX}, v{V_XX}, v{V_XX} row_bcast:15 row_mask:0xa bank_mask:0xf')
            a.nop(2)
            a(f'v_max_f32_dpp v{V_XX}, v{V_XX}, v{V_XX} row_bcast:31 row_mask:0xc bank_mask:0xf')
            a.nop(1)
            a(f'v_readlane_b32 s62, v{V_XX}, 63')
            a.nop(2)
            a(f'v_max_f32 v{V_MN}, s62, v{V_M}')
            a(f'v_sub_f32 v{V_AL}, v{V_M}, v{V_MN}')
            a(f'v_exp_f32 v{V_AL}, v{V_AL}')
            a(f'v_mov_b32 v{V_M}, v{V_MN}')
            for k in range(4): a(f'v_mul_f32 v{V_ACC+k}, v{V_ACC+k}, v{V_AL}')
            a(f'v_mul_f32 v{V_L}, v{V_L}, v{V_AL}')
            a(f's_branch L_A_maxd{tag}')
        tails.append(upd)
    def aop(i, T=V_T):
        p = V_P0 + (i & 1)
        a(f'v_cvt_pk_bf16_f32 v{p}, v{T+i}, v{T+i}')
        a(f'v_add_f32 v{V_L}, v{V_L}, v{T+i}')
        for k in range(4): a(f'v_and_b32 v{V_A+4*i+k}, v{p}, v{V_MASK+k}')
    def pv(i, Vr):
        a(f'v_mfma_f32_16x16x32_bf16 {vr(V_ACC,4)}, {vr(V_A+4*i,4)}, {vr(Vr,4)}, {vr(V_ACC,4)}')
    def deposit(s, between=None):
        a(f'v_add_f32_dpp v{V_L}, v{V_L}, v{V_L} row_bcast:15 row_mask:0xa bank_mask:0xf')
        a.nop(2)
        a(f'v_add_f32_dpp v{V_L}, v{V_L}, v{V_L} row_bcast:31 row_mask:0xc bank_mask:0xf')
        a('s_mov_b32 exec_lo, 0\ns_brev_b32 exec_hi, 1')
        a(f'ds_write_b64 v{V_SA}, {vr(V_M,2)} offset:{L_S + 64*s}')
        a('s_mov_b32 exec_lo, -1\ns_mov_b32 exec_hi, 0')
        a(f'ds_write_b128 v{V_OA}, {vr(V_ACC,4)} offset:{L_O + 512*s}')
        a('s_mov_b64 exec, -1')
        if between: between()
        a('s_waitcnt lgkmcnt(0)')
    def body(L, tag, last, kind='D'):
        first = (tag == 'a') or (N1 == 0 and not sep)
        a('.p2align 6')
        a.label(f'L_A_loop{tag}')
        if first:
            a(f's_cmp_lt_u32 s{S_IT}, {P}\ns_cbranch_scc1 L_A_back')
            a.label('L_A_backd')
        def switch(u, t):
            a(f's_lshr_b32 s62, s{u}, 9')
            a(f's_cmp_lg_u32 s62, s{S_PH}\ns_cbranch_scc1 L_A_sw{t}')
            a.label(f'L_A_swd{t}')
            def sw():
                a.label(f'L_A_sw{t}')
                a(f's_mov_b32 s{S_PH}, 1')
                if kind == 'K':
                    a(f'v_max_f32 v{V_M0}, v{V_M0}, v{V_MC}\nv_mov_b32 v{V_MC}, {M0:#x}')
                else:
                    a.nop(4)
                    deposit(0)
                    a(f'v_mov_b32 v{V_M}, {"v%d" % V_MC if sep else hex(M0)}\nv_mov_b32 v{V_L}, 0')
                    for k in range(4): a(f'v_mov_b32 v{V_ACC+k}, 0')
                    stamp(a, cfg, 4)
                if kind != 'V':
                    for k in range(4): a(f'v_mov_b32 v{V_QC+k}, v{V_Q2+k}')
                a(f's_branch L_A_swd{t}')
            tails.append(sw)
        if kind != 'D':
            a(f's_add_u32 s{S_C2}, s{S_CUR}, {PER}')
            unit_off(a, cfg, S_OV, S_C2, S_HB)
        if not cfg.quad and (kind != 'D' or not sep): switch(S_CUR, tag)
        if kind == 'V': a('s_waitcnt lgkmcnt(0)')
        deal = (last is None or last > NS - 2 - P) and POOL < NT
        wg1 = cfg.wg1 and kind == 'V'
        assert not cfg.wg1 or (sep and NE == NS)
        def grab(lab, first_it):
            a(f's_cmp_lt_u32 s{S_IT}, {first_it}\ns_cbranch_scc1 {lab}')
            if wg1: a(f's_cmp_lg_u32 s{S_W}, 0\ns_cbranch_scc1 {lab}')
            if cfg.ahead: a(f's_cmp_ge_u32 s{S_NXT}, {NT}\ns_cbranch_scc1 {lab}')
            if cfg.Gs > cfg.G: a(f's_mov_b32 s{S_GR}, {NT}\ns_cmp_ge_u32 s{S_CUR}, {NT - cfg.Gs}\ns_cbranch_scc1 {lab}')
            if lds:
                a('s_mov_b64 exec, 1')
                a(f'ds_add_rtn_u32 v{V_QA}, v{V_CA}, v{V_ONE}')
                a('s_mov_b64 exec, -1')
            else:
                a(f's_mov_b32 s{S_GR}, {8 if wg1 else 1}')
                a(f's_atomic_add s{S_GR}, s[{S_CTR}:{S_CTR+1}], 0 glc')
            a.label(lab)
        late = lds and L <= 4
        if deal and not cfg.ahead and not late: grab(f'L_A_nog{tag}', f's{S_DL}')
        def signal():
            if not cfg.sig: return
            g = gates(cfg)
            assert g == sorted(set(g)) and not cfg.col
            for n in g: a(f's_cmp_eq_u32 s{S_GR}, {n - 1}\ns_cbranch_scc1 L_A_sig{tag}')
            a.label(f'L_A_sigd{tag}')
            def out():
                a.label(f'L_A_sig{tag}')
                a(f's_mov_b32 s65, 1\ns_atomic_add s65, s[{S_CTR}:{S_CTR+1}], 0x400 glc')
                a(f's_branch L_A_sigd{tag}')
            tails.append(out)
        def take():
            a(f's_add_u32 s{S_NXT}, s{S_CUR}, {PER if kind == "D" else 2*PER}')
            if kind == 'K' and last == NK:
                a(f's_cmp_eq_u32 s{S_IT}, {NK - 1}\ns_cselect_b32 s{S_NXT}, s{S_U0}, s{S_NXT}')
                a(f's_cselect_b64 s[{SRD_K}:{SRD_K+1}], s[{S_VB}:{S_VB+1}], s[{SRD_K}:{SRD_K+1}]')
            if kind == 'V' and last == NE - P:
                a(f's_cmp_eq_u32 s{S_IT}, {last - 1}\ns_cselect_b64 s[{SRD_K}:{SRD_K+1}], s[{S_KB}:{S_KB+1}], s[{SRD_K}:{SRD_K+1}]')
            if deal:
                a(f's_cmp_lt_u32 s{S_IT}, {NS - 1 - P}\ns_cbranch_scc1 L_A_not{tag}')
                if cfg.E:
                    a(f's_mov_b32 s{S_NXT}, s{S_PX}\ns_add_u32 s{S_PX}, s{S_PX}, {PER // 2}')
                    a(f's_cmp_lt_u32 s{S_IT}, s{S_DL}\ns_cbranch_scc1 L_A_not{tag}')
                if cfg.wgt or wg1:
                    a(f's_cmp_eq_u32 s{S_W}, 0\ns_cbranch_scc1 L_A_tw{tag}')
                    a('s_mov_b32 s64, 0')
                    a.label(f'L_A_tr{tag}')
                    a(f'ds_read_b32 v{V_ONE}, v{V_CA}')
                    a(f's_add_u32 s64, s64, 1\ns_cmp_ge_u32 s64, {SPIN_LIMIT}\ns_cselect_b32 s62, 0, -1')
                    a('s_waitcnt lgkmcnt(0)')
                    a(f'v_readfirstlane_b32 s{S_GR}, v{V_ONE}')
                    a('s_nop 0')
                    a(f's_and_b32 s62, s62, s{S_GR}\ns_cmp_eq_u32 s62, -1\ns_cbranch_scc1 L_A_tr{tag}')
                    a(f's_branch L_A_td{tag}')
                    a.label(f'L_A_tw{tag}')
                    a('s_waitcnt lgkmcnt(0)')
                    a(f's_add_u32 s{S_GR}, s{S_GR}, 1')
                    a(f'v_mov_b32 v{V_ONE}, s{S_GR}')
                    a(f'ds_write_b32 v{V_CA}, v{V_ONE}')
                    if not wg1: signal()
                    a.label(f'L_A_td{tag}')
                if wg1:
                    a(f's_min_u32 s{S_GR}, s{S_GR}, {NT}\ns_add_u32 s{S_GR}, s{S_GR}, s{S_W}')
                    signal()
                    a(f's_add_u32 s{S_NXT}, s{S_GR}, {POOL}')
                elif cfg.wgt:
                    a(f'v_add_u32 v{V_CA}, 4, v{V_CA}')
                    a(f's_min_u32 s{S_GR}, s{S_GR}, {NT}')
                    if cfg.quad: a(f's_add_u32 s{S_NXT}, s{S_GR}, {POOL}')
                    else: a(f's_lshl3_add_u32 s{S_NXT}, s{S_GR}, s{S_PW}')
                    assert (NT - POOL) // (1 if cfg.quad else 8) < 64
                else: a('s_waitcnt lgkmcnt(0)')
                if cfg.wgt or wg1: pass
                elif lds:
                    a(f'v_readfirstlane_b32 s{S_GR}, v{V_QA}')
                    a('s_nop 0')
                    a(f's_lshr_b32 s62, s{S_GR}, 3\ns_mul_i32 s62, s62, {PER - 8}\ns_add_u32 s62, s62, s{S_GR}\ns_add_u32 s62, s62, s{S_PW}')
                    a(f's_mul_i32 s63, s{S_GR}, {NA}\ns_add_u32 s63, s63, s{S_PX}')
                    a(f's_cmp_lt_u32 s{S_GR}, {TD}\ns_cselect_b32 s{S_NXT}, s62, s63')
                else:
                    a(f's_add_u32 s{S_GR}, s{S_GR}, 1')
                    signal()
                    a(f's_min_u32 s{S_GR}, s{S_GR}, {NT}')
                    if cfg.col: a(f's_lshl3_add_u32 s{S_NXT}, s{S_GR}, s{S_PW}')
                    else: a(f's_add_u32 s{S_NXT}, s{S_GR}, {POOL}')
                a.label(f'L_A_not{tag}')
            if cfg.loopst:
                a(f's_add_u32 s93, s{S_IT}, {16 + P}\ns_min_u32 s93, s93, 63\ns_mov_b32 m0, s93')
                stamp(a, cfg, 'm0')
            if deal and cfg.ahead: grab(f'L_A_nog{tag}', NS - 2 - P)
            unit_off(a, cfg, S_ON, S_NXT, S_HB)
            if deal:
                a(f's_cmp_lt_u32 s{S_NXT}, {NT}\ns_cselect_b32 s{SRD_K+2}, s{SRD_K+2}, 0')
                if L > 4: a(f's_mov_b32 s{SRD_V+2}, s{SRD_K+2}')
        lo = 0 if kind == 'K' else NK
        span_ = (max(int(c, 16) for c in cfg.rkt) + 1) // 2
        paced = kind != 'D' and any(t < last and t + span_ >= lo for t in RK)
        def rank(hf):
            for k, t in enumerate(RK):
                for ph, it in ((0, t), (2, t + 1)) if hf == 0 else ((1, t),):
                    if not lo <= it < last: continue
                    lab = f'L_A_rk{k}{ph}'
                    a(f's_cmp_eq_u32 s{S_IT}, {it}\ns_cbranch_scc1 {lab}')
                    a.label(lab + 'd')
                    def out(k=k, ph=ph, lab=lab):
                        a.label(lab)
                        if ph < 2: a(f's_cmp_lg_u32 s{S_W}, 0\ns_cbranch_scc1 {lab}d')
                        if ph == 0:
                            a(f's_lshr_b32 s62, s2, 3\ns_lshl_b32 s62, s62, 13\ns_add_u32 s62, s62, {WS_OA + 6*1024 + 0x200 + 0x80*k:#x}')
                            a(f's_mov_b32 s{S_RK}, 1\ns_atomic_add s{S_RK}, s[{P_WS}:{P_WS+1}], s62 glc')
                        elif ph == 1:
                            a('s_waitcnt lgkmcnt(0)')
                            a(f's_add_u32 s{S_RK}, s{S_RK}, 1')
                            a(f'v_mov_b32 v{V_ONE}, s{S_RK}')
                            a(f'ds_write_b32 v{V_CA}, v{V_ONE} offset:{L_CT + 4*k}')
                        else:
                            a(f'ds_read_b32 v{V_ONE}, v{V_CA} offset:{L_CT + 4*k}')
                            a('s_waitcnt lgkmcnt(0)')
                            a(f'v_readfirstlane_b32 s62, v{V_ONE}')
                            a('s_nop 0')
                            a(f's_min_u32 s62, s62, 7\ns_lshl_b32 s62, s62, 2\ns_lshr_b32 s62, 0x{cfg.rkt}, s62\ns_and_b32 s{S_TH}, s62, 15')
                        a(f's_branch {lab}d')
                    tails.append(out)
            a(f's_cmp_gt_i32 s{S_TH}, 0\ns_cselect_b64 vcc, -1, 0\ns_sub_u32 s{S_TH}, s{S_TH}, 1')
        def step(j, use):
            m = j + L
            if paced and j % 4 == 0: rank(j // 4)
            if m == 8: take()
            a(f's_waitcnt vmcnt({L-1})')
            if paced: a(f's_cbranch_vccz L_A_pc{tag}{j}\ns_waitcnt vmcnt({L-2})\nL_A_pc{tag}{j}:')
            if L == 8: use()
            load(V_R, m % 8, S_ON if m >= 8 else S_OV if m >= 4 and kind != 'D' else S_OC)
            if L < 8: use()
        if kind == 'D':
            for i in range(4):
                step(i, lambda: score(i, V_R + 4*i))
                rowsum([i])
            if deal and late: grab(f'L_A_nog{tag}', f's{S_DL}')
            soft(tag)
            for i in range(4):
                aop(i)
                step(4 + i, lambda: (a('s_nop 0') if L == 8 else None, pv(i, V_R + 16 + 4*i)))
        for hf, T, T_ in ((0, V_T, V_T2), (1, V_T2, V_T)) if kind != 'D' else ():
            if hf: switch(S_C2, tag + '2')
            if kind == 'K':
                for i in range(4):
                    step(4*hf + i, lambda: score(i, V_R + 16*hf + 4*i, T))
                    rowsum([i], T)
                keep(T, V_SP, 64*hf, V_MC)
            else:
                if hf: a('s_waitcnt lgkmcnt(0)')
                a(f'ds_read_b128 {vr(T_,4)}, v{V_SP} offset:{64*(hf + 1)}')
                for i in range(4): a(f'v_sub_f32 v{T+i}, v{T+i}, v{V_M}')
                for i in range(4): a(f'v_exp_f32 v{T+i}, v{T+i}')
                for i in range(4):
                    aop(i, T)
                    step(4*hf + i, lambda: pv(i, V_R + 16*hf + 4*i))
        if kind != 'D': a(f'v_add_u32 v{V_SP}, 128, v{V_SP}')
        a(f's_mov_b32 s{S_CUR}, s{S_NXT}\ns_mov_b32 s{S_OC}, s{S_ON}')
        a(f's_add_u32 s{S_IT}, s{S_IT}, 1')
        if last is None: a(f's_cmp_lt_u32 s{S_CUR}, {NT - cfg.G}')
        else:
            if deal: a(f's_cmp_ge_u32 s{S_CUR}, {NT}\ns_cbranch_scc1 L_A_out')
            a(f's_cmp_lt_u32 s{S_IT}, {last}')
        a(f's_cbranch_scc1 L_A_loop{tag}')
    def back():
        a.label('L_A_back')
        for u in range(P):
            if u < P - 1: a(f's_cmp_lg_u32 s{S_IT}, {u}\ns_cbranch_scc1 L_A_bk{u+1}')
            X = V_X + 32 * u
            if sep:
                for hf, T in ((0, V_T), (1, V_T2)):
                    for i in range(4): score(i, X + 16*hf + 4*i, T, V_Q)
                    rowsum([0, 1, 2, 3], T)
                    keep(T, V_SB, 128*u + 64*hf, V_M0)
            else:
                for i in range(4): score(i, X + 4*i)
                rowsum([0, 1, 2, 3])
                soft(f'x{u}')
                for i in range(4): aop(i)
                for i in range(4): pv(i, X + 16 + 4*i)
            a('s_branch L_A_backd')
            if u < P - 1: a.label(f'L_A_bk{u+1}')
    if sep:
        assert (N1 == 0 or P <= N1 <= NS - 2 - P) and L2 >= L1
        ends = sorted({NK, NE - P} | ({N1} if N1 else set()))
        for n, end in enumerate(ends):
            body(L1 if end <= N1 else L2, 'acde'[n], end, 'K' if end <= NK else 'V')
            if end == N1:
                for m in range(L1, L2): load(V_R, m, S_OC)
            if end == NK:
                a(f's_mov_b64 s[{SRD_V}:{SRD_V+1}], s[{S_VB}:{S_VB+1}]\ns_mov_b32 s{S_PH}, 0')
                a(f'v_mov_b32 v{V_SP}, v{V_SB}')
                a(f'ds_read_b128 {vr(V_T,4)}, v{V_SB}')
                xrow_allreduce(a, 'v_max_f32', V_M0, V_XX)
                xrow_allreduce(a, 'v_max_f32', V_MC, V_XX)
                a(f'v_mov_b32 v{V_M}, v{V_M0}')
                stamp(a, cfg, 3)
        a('s_waitcnt lgkmcnt(0)')
        if cfg.G: a(f's_cmp_ge_u32 s{S_CUR}, {NT - cfg.G}\ns_cbranch_scc1 L_A_fin')
    elif N1 > 0:
        assert P <= N1 and L2 >= L1
        body(L1, 'a', N1)
        for m in range(L1, L2): load(V_R, m, S_OC)
    body(L2, 'b', None)
    assert max(cfg.G, cfg.Gs) <= min(PER, NT - POOL)
    if cfg.G:
        assert not lds and not cfg.col and not cfg.ahead and (cfg.quad or POOL >= 512 + PER) and N1 <= NS - 2 - P
        a(f's_cmp_ge_u32 s{S_CUR}, {NT}\ns_cbranch_scc1 L_A_out')
        a.label('L_A_fin')
        for m in range(L2, 8): load(V_R, m, S_OC)
        if cfg.adry >= 0: a.label('L_A_dry')
        for i in range(4):
            a(f's_waitcnt vmcnt({7 - i})')
            score(i, V_R + 4*i)
        rowsum([0, 1, 2, 3])
        if cfg.loopst:
            a(f's_add_u32 s93, s{S_IT}, {16 + P}\ns_min_u32 s93, s93, 63\ns_mov_b32 m0, s93')
            stamp(a, cfg, 'm0')
        soft('f')
        for i in range(4): aop(i)
        for i in range(4):
            a(f's_waitcnt vmcnt({3 - i})')
            pv(i, V_R + 16 + 4*i)
    elif cfg.adry >= 0: a.label('L_A_dry')
    a.label('L_A_out')
    stamp(a, cfg, 5)
    if POOL < 512 + PER and not cfg.quad:
        a(f's_cmp_eq_u32 s{S_PH}, 0\ns_cbranch_scc1 L_A_swe')
        a.label('L_A_swde')
        def swe():
            a.label('L_A_swe')
            a.nop(4)
            deposit(0)
            a(f'v_mov_b32 v{V_M}, {M0:#x}\nv_mov_b32 v{V_L}, 0')
            for k in range(4): a(f'v_mov_b32 v{V_ACC+k}, 0')
            a('s_branch L_A_swde')
        tails.append(swe)
    O, ST = V_A, V_A + 4
    MX, LS, G = V_A + 6, V_A + 7, V_A + 8
    if cfg.quad:
        a(f'v_add_f32_dpp v{V_L}, v{V_L}, v{V_L} row_bcast:15 row_mask:0xa bank_mask:0xf')
        a(f'v_mov_b32 v{V_TMP}, s{S_TAG}')
        a(f'v_mov_b32 v{MX}, v{V_M}')
        a(f'v_add_f32_dpp v{V_L}, v{V_L}, v{V_L} row_bcast:31 row_mask:0xc bank_mask:0xf')
        a.nop(1)
        a(f'v_readlane_b32 s62, v{V_L}, 63')
        a.nop(2)
        a(f'v_log_f32 v{ST}, s62')
        a(f'v_rcp_f32 v{LS}, s62')
    else:
        assert not (cfg.trim and cfg.rot and cfg.adry >= 0)
        def merge_setup():
            a(f'v_and_b32 v{V_TMP+1}, 7, v{V_LANE}')
            a(f's_lshr_b32 s62, s{S_W}, 2\ns_lshl_b32 s62, s62, 6')
            a(f'v_lshl_add_u32 v{V_TMP+1}, v{V_TMP+1}, 3, s62')
            a(f'v_mov_b32 v{V_TMP}, s{S_TAG}')
            a('s_mov_b32 s62, 0x05010400\ns_mov_b32 s63, 0x07030602')
            a('s_mov_b32 s68, 0x01010101\ns_mov_b32 s69, 0x01010101')
        deposit(1, merge_setup if cfg.trim else None)
        if cfg.adry >= 0:
            assert POOL >= 512 + PER
            a(f's_cmp_lg_u32 s{S_DRY}, 0\ns_cbranch_scc1 L_A_nobar')
        a('s_barrier')
        a.label('L_A_nobar')
        if cfg.trim:
            a(f'ds_read_b64 {vr(ST,2)}, v{V_TMP+1} offset:{L_S}')
            a(f'ds_read_b128 {vr(O,4)}, v{V_MA} offset:{L_O}')
            a('s_waitcnt lgkmcnt(1)')
            for n, ctl in enumerate(('quad_perm:[1,0,3,2]', 'quad_perm:[2,3,0,1]', 'row_half_mirror')):
                if n: a.nop(2)
                a(f'v_max_f32_dpp v{MX}, v{MX if n else ST}, v{MX if n else ST} {ctl} row_mask:0xf bank_mask:0xf')
            a(f'v_sub_f32 v{ST}, v{ST}, v{MX}')
            a(f'v_exp_f32 v{ST}, v{ST}')
            a('s_waitcnt lgkmcnt(0)')
        else:
            a(f'ds_read_b128 {vr(O,4)}, v{V_MA} offset:{L_O}')
            a(f'v_and_b32 v{V_TMP}, 7, v{V_LANE}')
            a(f's_lshr_b32 s62, s{S_W}, 2\ns_lshl_b32 s62, s62, 6')
            a(f'v_lshl_add_u32 v{V_TMP}, v{V_TMP}, 3, s62')
            a(f'ds_read_b64 {vr(ST,2)}, v{V_TMP} offset:{L_S}')
            a('s_waitcnt lgkmcnt(0)')
            a(f'v_mov_b32 v{MX}, v{ST}')
            allred8(a, 'v_max_f32', [MX])
            a(f'v_sub_f32 v{ST}, v{ST}, v{MX}')
            a(f'v_exp_f32 v{ST}, v{ST}')
            a(f'v_mov_b32 v{V_TMP}, s{S_TAG}')
        a(f'v_mul_f32 v{LS}, v{ST+1}, v{ST}')
        for k in range(4): a(f'v_mul_f32 v{O+k}, v{O+k}, v{ST}')
        allred8(a, 'v_add_f32', [LS, O, O + 1, O + 2, O + 3])
        if not lds: a(f'v_max_f32 v{LS}, 0x00800000, v{LS}')
        a(f'v_log_f32 v{ST}, v{LS}')
        a(f'v_rcp_f32 v{LS}, v{LS}')
    a('s_mov_b64 exec, s[68:69]' if cfg.trim else 's_mov_b32 s62, 0x05010400\ns_mov_b32 s63, 0x07030602')
    a(f'v_add_f32 v{MX}, v{MX}, v{ST}')
    for k in range(4): a(f'v_mul_f32 v{O+k}, v{(V_ACC if cfg.quad else O)+k}, v{LS}')
    a(f'v_perm_b32 v{ST}, v{MX}, v{V_TMP}, s62')
    a(f'v_perm_b32 v{ST+1}, v{MX}, v{V_TMP}, s63')
    a(f'v_cvt_pk_bf16_f32 v{O}, v{O}, v{O+1}')
    a(f'v_cvt_pk_bf16_f32 v{O+1}, v{O+2}, v{O+3}')
    if not cfg.trim: a('s_mov_b32 exec_hi, 0' if cfg.quad else 's_mov_b32 exec_lo, 0x01010101\ns_mov_b32 exec_hi, 0x01010101')
    for k in range(4): a(f'v_perm_b32 v{G+k}, v{O+k//2}, v{ST+k//2}, s{60+k%2}')
    if cfg.adry >= 0: a(f's_cmp_lg_u32 s{S_DRY}, 0\ns_cbranch_scc1 L_A_dryr')
    a(f'global_store_dwordx4 v{V_GA}, {vr(G,4)}, s[{P_WS}:{P_WS+1}] {cfg.rpol.replace("+", " ")}')
    stamp(a, cfg, 6)
    stamp_flush(a, cfg)
    a('s_endpgm')
    if cfg.adry >= 0:
        a.label('L_A_dryr')
        a(f's_mov_b64 exec, -1\ns_mov_b32 s{S_DRY}, 0')
        acc_init()
        a('s_branch L_A_dryd')
    back()
    for t in tails: t()

def tickets(cfg):
    if cfg.quad: return 512 - 4*NA*cfg.NS
    if cfg.col or cfg.wgt: return 128 - NA*cfg.NS
    return 1024 - 8*NA*cfg.NS - 4*NA*cfg.E
def gates(cfg):
    return ([cfg.hold] if cfg.hold else []) + ([max(1, tickets(cfg) - cfg.gleft)] if cfg.gate == 2 else [])

def role_table(rx):
    tab, m = [], 0
    for t in range(8):
        if t == 0: tab.append(NA)
        elif t == rx: tab.append(NA + 1)
        else: tab.append(m); m += 1
    return tab

def short_start(a, cfg):
    assert cfg.smap == '01234567' and cfg.gx and pf_plan(cfg.pf)[:NA] == 'qqqwww' and cfg.pf.count('q') == cfg.pf.count('w') == 1
    assert cfg.Lp >= 4 and not cfg.tch
    a(f'v_readfirstlane_b32 s{S_W}, v0')
    a(f's_lshr_b32 s{S_H}, s2, 3\ns_lshr_b32 s60, s2, 6\ns_lshl1_add_u32 s61, s60, 2\ns_sub_u32 s{S_R}, s{S_H}, s61\ns_and_b32 s{S_R}, s{S_R}, 7')
    a(f's_xor_b32 s61, s2, s60\ns_and_b32 s61, s61, 7\ns_lshl3_add_u32 s82, s60, s61')
    a(f's_lshr_b32 s{S_W}, s{S_W}, 6')
    a(f'v_and_b32 v{V_C}, 15, v0')
    a(f'v_bfe_u32 v{V_G}, v0, 4, 2')
    a(f'v_lshlrev_b32 v11, 4, v{V_C}')
    a('s_mov_b32 s87, 0x20000')
    if cfg.uni: pass
    elif cfg.wc:
        if cfg.stamps: a('v_mov_b32 v254, 0')
        a(f's_cmp_eq_u32 s{S_R}, {NA}\ns_cbranch_scc1 L_roleW\ns_cmp_eq_u32 s{S_R}, {NA+1}\ns_cbranch_scc1 L_roleC')
    else: a(f's_cmp_ge_u32 s{S_R}, {NA}\ns_cbranch_scc1 L_ids')
    a(f'v_lshl_add_u32 v9, v{V_G}, 13, v11')
    if cfg.uni:
        a(f's_add_u32 s63, s{S_R}, 1\ns_and_b32 s60, s63, 3\ns_bitcmp1_b32 s63, 2\ns_cselect_b32 s61, 0, {cfg.rx}')
    else:
        a(f's_cmp_ge_u32 s{S_R}, 3\ns_cselect_b32 s60, -2, 1\ns_cselect_b32 s61, 0, {cfg.rx}')
        a(f's_add_u32 s60, s60, s{S_R}')
    a(f's_lshl3_add_u32 s60, s60, s{S_W}\ns_lshl_b32 s60, s60, 9')
    a('s_xor_b32 s61, s61, s82\ns_add_u32 s60, s60, s61\ns_lshl_b32 s88, s60, 8')
    a('s_lshl_b32 s89, 1, 15\ns_add_u32 s60, s88, s89\ns_add_u32 s61, s60, s89\ns_add_u32 s62, s61, s89')
    a('s_mov_b32 s86, 0x400000')
    a('s_bitcmp1_b32 s63, 2' if cfg.uni else f's_cmp_ge_u32 s{S_R}, 3')
    a('s_waitcnt lgkmcnt(0)')
    a(f's_cselect_b64 s[84:85], s[{P_BWQ}:{P_BWQ+1}], s[{P_AWQ}:{P_AWQ+1}]\ns_and_b32 s85, s85, 0xffff')
    if cfg.stamps: a('s_memrealtime s[100:101]')
    for i in range(4): a(f'buffer_load_dwordx4 {vr((128 if cfg.uni else 20) + 4*i, 4)}, v9, s[84:87], s{59 + i if i else 88} offen {"nt" if cfg.pfnt else cfg.pfpol.replace("+", " ")}')
    if cfg.uni:
        assert cfg.wc
        if cfg.stamps: a('v_mov_b32 v254, 0')
        a(f's_cmp_eq_u32 s{S_R}, {NA}\ns_cbranch_scc1 L_roleW\ns_cmp_eq_u32 s{S_R}, {NA+1}\ns_cbranch_scc1 L_roleC')
    a.label('L_ids')
    a(f'v_and_b32 v{V_LANE}, 63, v0')
    a(f's_lshl_b32 s61, s{S_R}, 2\ns_lshr_b32 s61, {sum(t << 4*r for t, r in enumerate(role_table(cfg.rx))):#x}, s61')
    a(f's_and_b32 s61, s61, 7\ns_xor_b32 s{S_H}, s82, s61')
    if cfg.stamps: a('s_memrealtime s[98:99]\ns_memrealtime s[94:95]')

def build(cfg):
    global CFG
    CFG = cfg
    a = Asm()
    hdr = open(os.path.join(os.path.dirname(os.path.abspath(__file__)), 'header.txt')).read().rstrip('\n')
    a(hdr)
    a(f'; @launch grid=(256,1,1) block=(512,1,1) lds={LDS_BYTES}')
    for l in DESCRIPTION.strip().split('\n'): a('; ' + l)
    if cfg.span or cfg.stamps: a(f'; rx={99 if cfg.quad else cfg.rx} wgt={int(cfg.wgt)} smap={cfg.smap} gx={int(cfg.gx)} late={cfg.late}')
    a('.amdgcn_target "amdgcn-amd-amdhsa--gfx950"')
    a('.text')
    a(f'.globl {NAME}_kernel')
    a(f'.p2align {cfg.al}')
    a(f'.type {NAME}_kernel,@function')
    a.label(f'{NAME}_kernel')
    if cfg.stamps or cfg.dbgst: a('s_memrealtime s[96:97]')
    span_mark(a, cfg, False)
    a(f's_cmp{"k" if cfg.late == 2 else ""}_ge_u32 s2, 256\ns_cbranch_scc1 L_exit')
    for n in range(cfg.hop): a(f's_branch L_hop{n}\n.p2align 8\nL_hop{n}:')
    a('s_load_dwordx16 s[4:19], s[0:1], 0')
    a('s_load_dwordx8 s[20:27], s[0:1], 64')
    a('s_load_dwordx4 s[28:31], s[0:1], 96')
    if cfg.idmul: a(f's_mul_i32 s2, s2, {cfg.idmul}\ns_and_b32 s2, s2, 255')
    if cfg.late < 2: a(f'v_lshrrev_b32 v8, 6, v0')
    if cfg.late == 2: short_start(a, cfg)
    elif cfg.quad:
        a(f's_lshr_b32 s{S_H}, s2, 3')
        a(f's_and_b32 s60, s{S_H}, 3\ns_bfe_u32 s61, s2, 0x20001\ns_and_b32 s62, s2, 7')
        a(f's_mul_i32 s{S_M}, s62, 3\ns_add_u32 s{S_M}, s{S_M}, s60')
        a(f's_cmp_gt_u32 s60, s61\ns_subb_u32 s{S_M}, s{S_M}, 0')
        a(f's_lshr_b32 s62, s2, 5\ns_xor_b32 s62, s62, s2\ns_and_b32 s62, s62, 1\ns_add_u32 s62, s62, {NA}')
        a(f's_cmp_eq_u32 s60, s61\ns_cselect_b32 s{S_R}, s62, 0')
    elif cfg.same:
        a(f's_and_b32 s60, s2, 7\ns_lshr_b32 s61, s2, 6\ns_lshl_b32 s61, s61, 3\ns_add_u32 s{S_H}, s60, s61')
        a(f's_bfe_u32 s{S_R}, s2, 0x30003')
    else:
        a(f's_lshr_b32 s{S_H}, s2, 3')
        if cfg.smap:
            tab = role_table(cfg.rx)
            for g in range(4):
                jw, jc = int(cfg.smap[2*g]), int(cfg.smap[2*g+1])
                rows = iter([(k - 2*g) % NA for k in range(NA)] if cfg.rrot else range(NA))
                word = sum((NA if j == jw else NA + 1 if j == jc else next(rows)) << 4*j for j in range(8))
                if g == 0: a(f's_mov_b32 s60, {word:#x}')
                elif cfg.smap[2*g:2*g+2] != cfg.smap[2*g-2:2*g]: a(f's_cmp_ge_u32 s2, {64*g}\ns_cselect_b32 s60, {word:#x}, s60')
            a(f's_and_b32 s61, s{S_H}, 7\ns_lshl_b32 s61, s61, 2\ns_lshr_b32 s{S_R}, s60, s61\ns_and_b32 s{S_R}, s{S_R}, 7')
            a(f's_lshl_b32 s61, s{S_R}, 2\ns_lshr_b32 s61, {sum(t << 4*r for t, r in enumerate(tab)):#x}, s61\ns_xor_b32 s61, s61, s2')
            if cfg.gx: a('s_lshr_b32 s60, s2, 6\ns_xor_b32 s61, s61, s60')
            a(f's_and_b32 s61, s61, 7\ns_andn2_b32 s{S_H}, s{S_H}, 7\ns_or_b32 s{S_H}, s{S_H}, s61')
        elif cfg.rx:
            tab = role_table(cfg.rx)
            a(f's_xor_b32 s{S_R}, s2, s{S_H}\ns_and_b32 s{S_R}, s{S_R}, 7\ns_lshl_b32 s{S_R}, s{S_R}, 2')
            a(f's_lshr_b32 s{S_R}, {sum(r << 4*t for t, r in enumerate(tab)):#x}, s{S_R}')
        elif cfg.rmap == 1: a(f's_sub_u32 s{S_R}, s2, s{S_H}')
        else: a(f's_mul_i32 s{S_R}, s{S_H}, {cfg.rmap}\ns_sub_u32 s{S_R}, s2, s{S_R}')
        a(f's_and_b32 s{S_R}, s{S_R}, 7')
    if cfg.late < 2:
        a(f'v_readfirstlane_b32 s{S_W}, v8')
        lane_ids(a)
    if cfg.stamps: a('v_mov_b32 v254, 0')
    def first_unit():
        a(f'v_lshlrev_b32 v8, 4, v{V_LANE}')
        if cfg.lay:
            gm, im, um = LAYOUTS[cfg.lay]
            full = 0
            for m_ in gm + im: full |= m_
            assert not any(full >> b & 1 for _, cnt, bit in um for b in range(bit, bit + cnt))
            a(f'v_lshlrev_b32 v8, 4, v{V_C}')
            for k in range(2):
                a(f'v_bfe_i32 v9, v0, {4+k}, 1')
                a(f'v_and_b32 v9, {gm[k]:#x}, v9')
                a('v_xor_b32 v8, v8, v9')
            for i in range(1, 4):
                a(f'v_xor_b32 v{8+i}, {(im[0] if i & 1 else 0) ^ (im[1] if i & 2 else 0):#x}, v8')
        if cfg.quad:
            a(f's_add_u32 s60, s{S_W}, {0 if cfg.wgt else "s%d" % S_M}\ns_and_b32 s55, s60, 1\ns_lshl_b32 s55, s55, 26')
            a(f's_bfe_u32 s60, s60, 0x20001\ns_andn2_b32 s61, s{S_H}, 3\ns_or_b32 s60, s60, s61')
            a(f's_cmp_eq_u32 s{S_R}, 0\ns_cselect_b32 s{S_H}, s60, s{S_H}')
            a(f's_mov_b32 s35, s{S_M}')
        else:
            a(f's_bfe_u32 s55, s{S_H}, {(1 << 16) | cfg.xorb:#x}\ns_lshl_b32 s55, s55, 26')
            a(f's_lshl_b32 s35, s{S_R}, 3\ns_add_u32 s35, s35, s{S_W}')
        if cfg.rot:
            if cfg.quad: a(f's_lshr_b32 s60, s55, 26\ns_lshl1_add_u32 s60, s{S_H}, s60\ns_mul_i32 s{S_ROT}, s60, {cfg.rot}')
            elif cfg.rot < 0: a(f's_lshr_b32 s{S_ROT}, s{S_H}, 4\ns_mul_i32 s{S_ROT}, s{S_ROT}, {-cfg.rot}')
            else: a(f's_mul_i32 s{S_ROT}, s{S_H}, {cfg.rot}')
        unit_off(a, cfg, 37, 35, 55)
    if not cfg.late: first_unit()
    if not cfg.late: args_wait(a, cfg)
    if not cfg.wc:
        a(f's_cmp_eq_u32 s{S_R}, {NA}\ns_cbranch_scc1 L_roleW')
        a(f's_cmp_eq_u32 s{S_R}, {NA+1}\ns_cbranch_scc1 L_roleC')
    role_A(a, cfg, first_unit)
    import roles2
    roles2.role_W(a, cfg)
    roles2.role_C(a, cfg)
    a.label('L_exit')
    a('s_endpgm')
    a(f'''.section .rodata,"a"
.p2align 6
.amdhsa_kernel {NAME}_kernel
  .amdhsa_next_free_vgpr 256
  .amdhsa_next_free_sgpr 102
  .amdhsa_accum_offset 256
  .amdhsa_group_segment_fixed_size 0
  .amdhsa_kernarg_size 112
  .amdhsa_user_sgpr_count 2
  .amdhsa_user_sgpr_kernarg_segment_ptr 1
  .amdhsa_system_sgpr_workgroup_id_x 1
.end_amdhsa_kernel''')
    return a.text()

if __name__ == '__main__':
    sys.modules['gen2'] = sys.modules['__main__']
    cfg = Cfg()
    out = None
    for arg in sys.argv[1:]:
        if '=' in arg:
            k, v = arg.split('=', 1)
            cur = getattr(cfg, k)
            setattr(cfg, k, type(cur)(v) if not isinstance(cur, bool) else v == '1')
        else: out = arg
    for k in ('kpol', 'vpol', 'bpol', 'cpol', 'wqpol', 'wopol'): setattr(cfg, k, getattr(cfg, k).replace('+', ' '))
    t = build(cfg)
    for p in lint(t):
        print('HAZARD line %d -> %d need %d have %d\n   %s\n   %s' % p, file=sys.stderr)
    if out: open(out, 'w').write(t)
    else: print(t)
```
